```python
import torch

def _softmax(x, axis=-1):
    return torch.softmax(x, dim=axis)
def _gelu(x):
    return torch.nn.functional.gelu(x, approximate="tanh")
def _silu(x):
    return torch.nn.functional.silu(x)
def _sigmoid(x):
    return torch.sigmoid(x)
def _layernorm(x, axis=-1, eps=1e-5):
    m = x.mean(dim=axis, keepdim=True)
    v = x.var(dim=axis, keepdim=True, unbiased=False)
    return (x - m) / torch.sqrt(v + eps)
def _scatter_add(tgt, idx, src, axis=0):
    return tgt.clone().index_add_(axis, idx, src)
def _segment_sum(src, seg, n):
    out = torch.zeros((n,) + src.shape[1:], dtype=src.dtype)
    return out.index_add_(0, seg, src)
def _pad(x, pw):
    flat = tuple(v for pair in reversed(pw) for v in pair)
    return torch.nn.functional.pad(x, flat)

kernel_name = 'standalone__gqa_block_cached__near_ridge'

def setup_inputs():

    _w = (lambda a: (lambda t: t.to(torch.bfloat16) if t.is_floating_point() else t)(torch.as_tensor(a)))
    B, Sq, D = 8, 224, 512
    Hq, Hkv, Sk, Dh = 32, 32, 512, 128
    assert Hq % Hkv == 0, (Hq, Hkv)
    return {
        "x": _w((lambda *s: torch.randn(*s, dtype=torch.bfloat16) * 0.8)(B, Sq, D)),
        "k_cache": _w((lambda *s: torch.randn(*s, dtype=torch.bfloat16) * 0.8)(B, Hkv, Sk, Dh)),
        "v_cache": _w((lambda *s: torch.randn(*s, dtype=torch.bfloat16) * 0.05)(B, Hkv, Sk, Dh)),
        "wq": _w((lambda *s: torch.randn(*s, dtype=torch.bfloat16) * 0.8)(D, Hq * Dh) * (D ** -0.5)),
        "wo": _w((lambda *s: torch.randn(*s, dtype=torch.bfloat16) * 0.05)(Hq * Dh, D) * ((Hq * Dh) ** -0.5)),
    }

def reference(x, k_cache, v_cache, wq, wo):
    B, Sq, D = x.shape
    Hq, Dh = 32, 128
    Hkv = k_cache.shape[1]
    rep = Hq // Hkv
    q = (lambda x, *d: x.permute(*d))((x @ wq).reshape(B, Sq, Hq, Dh), 0, 2, 1, 3)
    k = (lambda x, n, axis: torch.repeat_interleave(x, n, dim=axis))(k_cache, rep, axis=1)
    v = (lambda x, n, axis: torch.repeat_interleave(x, n, dim=axis))(v_cache, rep, axis=1)
    scores = torch.einsum("bhqd,bhkd->bhqk", q, k) * (Dh ** -0.5)
    p = _softmax(scores, axis=-1)
    o = torch.einsum("bhqk,bhkd->bhqd", p, v)
    return (lambda x, *d: x.permute(*d))(o, 0, 2, 1, 3).reshape(B, Sq, Hq * Dh) @ wo
```

```python
NAME = "standalone__gqa_block_cached__near_ridge"
HDR = """; Kernarg layout for this problem (64 bytes, ptrs only, base s[0:1]):
"""
def kernel_file(kernels, single=False):
    s = HDR
    for k in kernels:
        if single:
            s += "; @launch grid=(%d,1,1) block=(%d,1,1) lds=%d\n" % (k["grid"], k["block"], k["lds"])
        else:
            s += "; @launch kernel=%s grid=(%d,1,1) block=(%d,1,1) lds=%d\n" % (k["name"], k["grid"], k["block"], k["lds"])
    s += '.amdgcn_target "amdgcn-amd-amdhsa--gfx950"\n.text\n'
    seen = set()
    for k in kernels:
        if k["name"] in seen: continue
        seen.add(k["name"])
        s += ".globl %s\n.p2align 8\n.type %s,@function\n%s:\n" % (k["name"], k["name"], k["name"])
        s += k["body"] + "\n"
    s += '.section .rodata,"a"\n'
    seen = set()
    for k in kernels:
        if k["name"] in seen: continue
        seen.add(k["name"])
        s += ".p2align 6\n.amdhsa_kernel %s\n" % k["name"]
        s += "  .amdhsa_next_free_vgpr %d\n  .amdhsa_next_free_sgpr %d\n  .amdhsa_accum_offset %d\n" % (k["vgpr"], k.get("sgpr", 102), k["accum"])
        s += "  .amdhsa_group_segment_fixed_size 0\n  .amdhsa_kernarg_size 64\n  .amdhsa_user_sgpr_count 2\n  .amdhsa_user_sgpr_kernarg_segment_ptr 1\n  .amdhsa_system_sgpr_workgroup_id_x 1\n"
        for extra in k.get("extra", []): s += "  " + extra + "\n"
        s += ".end_amdhsa_kernel\n"
    return s
```

```python
import re, heapq

def regs_of(tok):
    tok = tok.strip()
    m = re.fullmatch(r'-?\|?([vas])\[(\d+):(\d+)\]\|?', tok)
    if m: return [m.group(1) + str(i) for i in range(int(m.group(2)), int(m.group(3)) + 1)]
    m = re.fullmatch(r'-?\|?([vas])(\d+)\|?', tok)
    if m: return [m.group(1) + m.group(2)]
    if tok in ('vcc', 'm0', 'exec'): return [tok]
    return []

TRANS = ('v_exp_f32', 'v_rcp_f32', 'v_log_f32', 'v_rsq_f32')
class I:
    __slots__ = ('text','op','kind','rd','wr','cost','xrd','xwr','srcc','srcab','idx','lat','prio','pin','passes','early')
    def __init__(self, text, xrd=(), xwr=(), cost=None, lat=None, early=None):
        self.text = text; self.xrd = list(xrd); self.xwr = list(xwr)
        t = text.split(';')[0].strip()
        parts = t.split(None, 1); op = parts[0]; self.op = op
        ops = [o.strip() for o in parts[1].split(',')] if len(parts) > 1 else []
        ops = [o.split()[0] if o else o for o in ops]
        rd = []; wr = []; self.srcc = []; self.srcab = []; self.passes = 0
        if op.startswith('v_mfma'):
            self.kind = 'mfma'; wr = regs_of(ops[0]); self.srcab = regs_of(ops[1]) + regs_of(ops[2]); self.srcc = regs_of(ops[3]); rd = self.srcab + self.srcc
            self.passes = 4 if '16x16x32' in op else 8
        elif op.startswith('ds_read'):
            self.kind = 'ldsr'; wr = regs_of(ops[0]); rd = regs_of(ops[1])
        elif op.startswith('ds_write'):
            self.kind = 'ldsw'; rd = regs_of(ops[0]) + regs_of(ops[1])
        elif op.startswith('buffer_load'):
            if re.search(r'\blds\b', t):
                self.kind = 'dma'; rd = regs_of(ops[0]) + regs_of(ops[1]) + regs_of(ops[2]) + ['m0']
            else:
                self.kind = 'vld'; wr = regs_of(ops[0]); rd = regs_of(ops[1]) + regs_of(ops[2]) + regs_of(ops[3])
        elif op.startswith('global_load'):
            self.kind = 'vld'; wr = regs_of(ops[0]); rd = regs_of(ops[1]) + regs_of(ops[2])
        elif op.startswith('buffer_store') or op.startswith('buffer_atomic'):
            self.kind = 'vst'; rd = regs_of(ops[0]) + regs_of(ops[1]) + regs_of(ops[2]) + regs_of(ops[3])
        elif op.startswith('v_'):
            self.kind = 'trans' if op.replace('_e32','').replace('_e64','') in TRANS else 'valu'
            if op.startswith('v_permlane'):
                wr = regs_of(ops[0]) + regs_of(ops[1]); rd = list(wr)
            elif op.startswith('v_cmp'):
                wr = regs_of(ops[0]); rd = sum((regs_of(o) for o in ops[1:]), [])
            else:
                wr = regs_of(ops[0]); rd = sum((regs_of(o) for o in ops[1:]), [])
                if op.startswith('v_fmac') or op.startswith('v_dot2c'): rd += wr
        elif op in ('s_waitcnt', 's_barrier', 's_nop', 's_sleep', 's_setprio'):
            self.kind = 'sopp'
        elif op.startswith('s_'):
            self.kind = 'salu'
            if op.startswith('s_cmp') or op.startswith('s_bitcmp'):
                wr = ['scc']; rd = sum((regs_of(o) for o in ops), [])
            elif op.startswith('s_cbranch') or op == 's_branch' or op == 's_endpgm':
                self.kind = 'br'
            else:
                wr = regs_of(ops[0]); rd = sum((regs_of(o) for o in ops[1:]), [])
                if op.startswith(('s_add', 's_sub', 's_and', 's_or', 's_xor', 's_lshl', 's_lshr', 's_min', 's_max', 's_bfe', 's_not')): wr = wr + ['scc']
                if op.startswith(('s_addc', 's_subb', 's_cselect')): rd = rd + ['scc']
                if op.startswith(('s_load', 's_memtime', 's_memrealtime')): self.kind = 'smem'
        elif op.endswith(':'):
            self.kind = 'label'
        else:
            raise ValueError(text)
        self.rd = rd; self.wr = wr
        dc = {'mfma': 8, 'trans': 8, 'dma': 8, 'vld': 8, 'vst': 8, 'ldsw': 8}.get(self.kind, 4)
        if op.startswith('v_pk_'): dc = 8
        self.cost = cost if cost is not None else dc
        self.lat = lat; self.early = early
    def __repr__(self): return self.text

LDS_LAT = 128
def edge_lat(p, c, typ, reg):
    if typ == 'raw':
        if p.lat is not None: return p.lat
        if p.kind == 'ldsr': return LDS_LAT
        if p.kind == 'vld': return 600
        if p.kind == 'mfma':
            if c.kind == 'mfma' and reg in c.srcc and reg not in c.srcab: return 4 * p.passes
            return 4 * p.passes + 36
        if p.kind == 'trans': return 12
        if p.kind == 'valu' and (c.kind == 'mfma' or c.op.startswith('v_permlane')): return 12
        if p.kind == 'salu' and reg == 'm0': return 8
        return p.cost
    if typ == 'war':
        if p.kind == 'mfma' and reg in p.srcc and c.kind != 'mfma': return 4 * p.passes + 4
        if p.kind in ('vst',): return 16
        return p.cost
    if typ == 'waw':
        if p.kind == 'mfma' and c.kind != 'mfma': return 4 * p.passes + 36
        if p.kind == 'ldsr': return LDS_LAT
        return p.cost

def schedule(prog, verbose=False, name=''):
    n = len(prog)
    preds = [[] for _ in range(n)]; succs = [[] for _ in range(n)]
    lastw = {}; readers = {}
    def add(a, b, l):
        if a == b: return
        preds[b].append((a, l)); succs[a].append((b, l))
    lastm = None; lastv = None
    for i, x in enumerate(prog):
        x.idx = i
        for r in x.rd + x.xrd:
            if r in lastw: add(lastw[r], i, edge_lat(prog[lastw[r]], x, 'raw', r) if r in x.rd else prog[lastw[r]].cost)
        for r in x.wr + x.xwr:
            tok = r not in x.wr
            if r in lastw: add(lastw[r], i, prog[lastw[r]].cost if tok else edge_lat(prog[lastw[r]], x, 'waw', r))
            for q in readers.get(r, []):
                l = edge_lat(prog[q], x, 'war', r)
                if tok and prog[q].kind in ('ldsr', 'ldsw'): l = 64
                if tok and prog[q].kind == 'dma' and prog[q].lat: l = prog[q].lat
                add(q, i, l)
        for r in x.rd + x.xrd: readers.setdefault(r, []).append(i)
        for r in x.wr + x.xwr: lastw[r] = i; readers[r] = []
        if x.kind == 'mfma':
            if lastm is not None: add(lastm, i, 4 * prog[lastm].passes)
            lastm = i
        if x.kind in ('dma', 'vld', 'vst'):
            if lastv is not None: add(lastv, i, prog[lastv].cost)
            lastv = i
    tail = [0] * n
    for i in range(n - 1, -1, -1):
        t = prog[i].cost
        for j, l in succs[i]: t = max(t, l + tail[j])
        tail[i] = t
    npred = [len(p) for p in preds]
    est = [0] * n
    ready = [i for i in range(n) if npred[i] == 0]
    out = []; t = 0; mfree = 0
    mf = [i for i in range(n) if prog[i].kind == 'mfma']; mi = 0
    pend = []
    issue_t = {}
    stalls = 0
    def needs_wait(x):
        regs = set(x.rd) | set(x.wr)
        k = -1
        for pos, q in enumerate(pend):
            if prog[q].kind == 'ldsr' and regs & set(prog[q].wr): k = pos
        return k
    def emit_wait(k, now):
        nonlocal pend
        while k + 1 < len(pend) and now - issue_t[pend[k + 1]] >= LDS_LAT: k += 1
        cnt = len(pend) - 1 - k
        if cnt > 15:
            cnt = 15
        w = I('s_waitcnt lgkmcnt(%d)' % cnt); out.append(w)
        pend = pend[len(pend) - cnt:] if cnt else []
    def issue(i):
        nonlocal t, mfree, mi, pend
        x = prog[i]
        k = needs_wait(x)
        if k >= 0:
            emit_wait(k, t); t += 4
        if x.kind == 'mfma':
            t = max(t, mfree); mfree = t + 4 * x.passes; mi += 1
        if x.op == 's_waitcnt' and 'lgkmcnt(0)' in x.text: pend = []
        out.append(x); issue_t[i] = t
        if x.kind in ('ldsr', 'ldsw'): pend.append(i)
        ready.remove(i)
        for j, l in succs[i]:
            est[j] = max(est[j], t + l); npred[j] -= 1
            if npred[j] == 0: ready.append(j)
        t += x.cost
    while ready:
        nm = mf[mi] if mi < len(mf) else None
        mready = nm is not None and nm in ready
        if mready:
            tm = max(mfree, est[nm])
            wcost = 4 if needs_wait(prog[nm]) >= 0 else 0
            if t + wcost >= tm:
                issue(nm); continue
            room = tm - t - wcost
        else:
            room = 1 << 30
        cands = [i for i in ready if prog[i].kind != 'mfma' and est[i] <= t and (prog[i].early is None or mi >= prog[i].early or not mready)]
        mt = tail[nm] if nm is not None else 0
        fit = [i for i in cands if prog[i].cost + (4 if needs_wait(prog[i]) >= 0 else 0) <= room]
        urgent = [i for i in cands if mready and tail[i] > mt + 8]
        if urgent:
            issue(max(urgent, key=lambda i: (tail[i], -i))); continue
        if fit:
            issue(max(fit, key=lambda i: (tail[i], -i))); continue
        if mready:
            k = needs_wait(prog[nm])
            if k >= 0: emit_wait(k, t); t += 4
            t = max(t, tm); issue(nm); continue
        nt = min(est[i] for i in ready)
        if nt <= t:
            issue(max(ready, key=lambda i: (tail[i], -i))); continue
        t = nt
    assert len([x for x in out if x.op != 's_waitcnt' or x in prog]) >= n - 0
    nmf = len(mf)
    if verbose:
        busy = sum(4 * prog[i].passes for i in mf)
        print('sched %s: %d insts, %d mfma, model cycles %d (mfma busy %d)' % (name, len(out), nmf, t, busy))
    return out

def fix_hazards(prog, verbose=False, name=''):
    out = []; nn = 0
    def states(x):
        if x.op == 's_nop': return int(x.text.split()[1]) + 1
        if x.kind == 'label': return 0
        return 1
    for x in prog:
        need = 0; dist = 0
        for p in reversed(out[-40:]):
            req = 0
            pw = set(p.wr); xr = set(x.rd); xw = set(x.wr)
            isv = lambda y: y.kind in ('valu', 'trans')
            if isv(p):
                if x.kind == 'mfma' and pw & xr: req = max(req, 2)
                if x.op.startswith('v_permlane') and pw & xr: req = max(req, 2)
                if x.op.startswith(('v_readfirstlane', 'v_readlane')) and pw & xr: req = max(req, 1)
                if p.kind == 'trans' and x.kind in ('valu', 'mfma', 'vst', 'ldsw') and pw & xr: req = max(req, 1)
                sw = {r for r in pw if r[0] == 's' or r == 'vcc'}
                if sw & xr:
                    if isv(x): req = max(req, 2)
                    if x.kind in ('dma', 'vld', 'vst'): req = max(req, 5)
                    if x.kind == 'salu': req = max(req, 1)
                if 'dpp' in x.text and pw & xr: req = max(req, 2)
                if 'exec' in pw: req = max(req, 5)
            if p.kind == 'mfma':
                big = {4: 8, 8: 12}[p.passes]
                if x.kind == 'mfma':
                    if pw & set(x.srcab): req = max(req, big)
                    if pw & set(x.srcc) and set(x.srcc) != pw: req = max(req, big - 2)
                    if pw & xw and not (pw & set(x.srcc)): req = max(req, big)
                elif pw & (xr | xw): req = max(req, big)
                if isv(x) and set(p.srcc) & xw: req = max(req, p.passes - 1)
                if x.kind in ('ldsr', 'vld') and set(p.srcc) & xw: req = max(req, p.passes - 1)
            if p.kind == 'salu' and 'm0' in pw and x.kind == 'dma': req = max(req, 1)
            if p.kind == 'salu' and 'exec' in pw and x.kind == 'mfma': req = max(req, 1)
            if p.kind in ('vst', 'ldsw') and x.kind in ('valu', 'trans', 'mfma', 'ldsr', 'vld') and (set(p.rd) & xw) and ('x4' in p.op or 'x3' in p.op or 'b128' in p.op): req = max(req, 2)
            if req > dist: need = max(need, req - dist)
            dist += states(p)
            if dist >= 20: break
        if need:
            out.append(I('s_nop %d' % (need - 1))); nn += 1
        out.append(x)
    if verbose: print('hazard %s: inserted %d nops' % (name, nn))
    return out

def vm_waits(prog):
    out = []; q = []
    for x in prog:
        m = re.search(r'vmcnt\(@([\w|]+)\)', x.text)
        if m:
            tags = m.group(1).split('|'); k = -1
            for pos, y in enumerate(q):
                mm = re.search(r';\s*tag=(\w+)', y.text)
                if mm and mm.group(1) in tags: k = pos
            cnt = min(63, len(q) - 1 - k)
            y = I(x.text.replace(m.group(0), 'vmcnt(%d)' % cnt)); out.append(y)
            q = q[len(q) - cnt:] if cnt else []
            continue
        if x.op == 's_waitcnt' and 'vmcnt(0)' in x.text: q = []
        regs = set(x.rd) | set(x.wr); k = -1
        for pos, y in enumerate(q):
            if y.kind == 'vld' and regs & set(y.wr): k = pos
        if k >= 0:
            cnt = min(63, len(q) - 1 - k)
            out.append(I('s_waitcnt vmcnt(%d)' % cnt)); q = q[len(q) - cnt:] if cnt else []
        out.append(x)
        if x.kind in ('dma', 'vld', 'vst'): q.append(x)
    return out

def lgkm_waits(prog):
    out = []; q = []
    for x in prog:
        if x.op == 's_waitcnt':
            m = re.search(r'lgkmcnt\((\d+)\)', x.text)
            if m:
                c = int(m.group(1)); q = q[len(q) - c:] if c else []
        regs = set(x.rd) | set(x.wr); k = -1
        for pos, y in enumerate(q):
            if y.kind == 'ldsr' and regs & set(y.wr): k = pos
        if k >= 0:
            cnt = min(15, len(q) - 1 - k)
            out.append(I('s_waitcnt lgkmcnt(%d)' % cnt)); q = q[len(q) - cnt:] if cnt else []
        out.append(x)
        if x.kind in ('ldsr', 'ldsw'): q.append(x)
    return out

def text(prog): return '\n'.join(('' if x.kind == 'label' else '    ') + x.text for x in prog)
```

```python
import sys, math, struct
from asmlib import *
from sched import *

def f2u(x): return struct.unpack('<I', struct.pack('<f', x))[0]
def q(p, b): return '%s[%d:%d]' % (p, b, b + 3)
def d(p, b): return '%s[%d:%d]' % (p, b, b + 1)
MF = 'v_mfma_f32_16x16x32_bf16'

class Cfg:
    stagger = True
    stamps = False
    warm_kb = 40
    kv_nt = ''
    st_mod = ''
    force_slow = False
C = Cfg

SX, SK, SV, SWQ, SWO, SOW, SWT, SOUT = 8, 12, 16, 20, 24, 28, 32, 36
sW, sP, sB, sH, sM4, sM7, sT0, sT1, sT2, sSC = 40, 41, 42, 43, 44, 45, 46, 47, 48, 49
sLO, sHI, sCNT, sOFF = 50, 51, 52, 53
sOS = 54
SST = 58+2
sXO, sWQO, sKVO = 64, 72, 80
sTM = 90
vLANE = 1
vKA, vVA, vDK, vDV, vDW, vDX, vXA, vXS, vEXW, vEXR, vOO, vOS = 2, 6, 14, 18, 22, 26, 33, 35, 36, 37, 38, 39
vT = 40
vS, vP, vU, vO = 48, 80, 112, 128
aQ, aL, aONE, aX, aF = 0, 64, 80, 84, 112
NAF = 16
KWIN = 0
XBASE = 28 * 1024
XST = {2: 0, 0: 28672, 1: 57344}
VWIN = 96 * 1024
WST = {0: 16384, 1: 32768, 2: 49152}
VSL = [49152, 16384, 32768, 0]
EXQ = 48 * 1024
EXO = 64 * 1024
OWS_BYTES = 8 * 32 * 56 * 1024
WT_OFF = 16 * 1024 * 1024
STAMP_OFF = 32 * 1024 * 1024

def srd(a, r, lo, hi, nrec):
    a('s_mov_b32 s%d, s%d' % (r, lo)); a('s_mov_b32 s%d, s%d' % (r + 1, hi))
    a('s_mov_b32 s%d, %s' % (r + 2, nrec)); a('s_mov_b32 s%d, 0x20000' % (r + 3))

class Stamper:
    def __init__(self): self.n = 0
    def entry(self, P):
        if not C.stamps: return
        n = self.n; self.n += 1
        for k in range(4): P.append(I('v_mov_b32 v%d, s%d' % (44 + k, 94 + k)))
        P.append(I('buffer_store_dwordx4 v[44:47], v43, s[%d:%d], 0 offen offset:%d' % (SST, SST + 3, n * 16)))
        P.append(I('s_nop 1'))
    def __call__(self, P):
        if not C.stamps: return
        n = self.n; self.n += 1
        P.append(I('s_memtime s[%d:%d]\n    s_memrealtime s[%d:%d]\n    s_waitcnt lgkmcnt(0)\n    v_mov_b32 v44, s%d\n    v_mov_b32 v45, s%d\n    v_mov_b32 v46, s%d\n    v_mov_b32 v47, s%d'
                   % (sTM, sTM+1, sTM+2, sTM+3, sTM, sTM+1, sTM+2, sTM+3), xrd=['ep'], xwr=['v44','v45','v46','v47', 'ep']))
        P.append(I('buffer_store_dwordx4 v[44:47], v43, s[%d:%d], 0 offen offset:%d' % (SST, SST + 3, n * 16), xrd=['ep']))

def p1_setup():
    L = []; a = lambda t, **k: L.append(I(t, **k))
    if C.stamps: a('s_memtime s[94:95]'); a('s_memrealtime s[96:97]')
    a('s_cmp_ge_u32 s2, 256'); a('s_cbranch_scc1 L1_end')
    a('s_load_dwordx16 s[64:79], s[0:1], 0')
    if C.warm_kb:
        a('s_getpc_b64 s[4:5]')
        a('v_lshlrev_b32 v40, 7, v0')
        for i in range((C.warm_kb + 31) // 32):
            if (i + 1) * 32 > C.warm_kb:
                a('v_min_u32 v40, %d, v40' % (C.warm_kb * 1024 - 128))
            a('global_load_dword v%d, v40, s[4:5]' % (255 - i))
            a('v_add_u32 v40, 0x8000, v40')
    a('v_lshrrev_b32 v40, 6, v0'); a('v_and_b32 v%d, 63, v0' % vLANE)
    a('v_readfirstlane_b32 s%d, v40' % sW)
    a('s_and_b32 s%d, s2, 1' % sT0); a('s_lshl_b32 s%d, s%d, 2' % (sT0, sT0))
    a('s_bfe_u32 s%d, s2, 0x20003' % sT1)
    a('s_add_u32 s%d, s%d, s%d' % (sB, sT0, sT1))
    a('s_bfe_u32 s%d, s2, 0x20001' % sT0); a('s_lshl_b32 s%d, s%d, 3' % (sT0, sT0))
    a('s_lshr_b32 s%d, s2, 5' % sT2)
    a('s_add_u32 s%d, s%d, s%d' % (sH, sT0, sT2))
    a('s_lshl_b32 s%d, s%d, 1' % (sT1, sT1)); a('s_add_u32 s3, s%d, s%d' % (sT1, sT2))
    if not C.stagger: a('s_mov_b32 s3, 0')
    a('s_and_b32 s%d, s%d, 1' % (sP, sW))
    a('s_lshl_b32 s%d, s%d, 12' % (sM4, sW)); a('s_mul_i32 s%d, s%d, 7168' % (sM7, sW))
    a('v_lshrrev_b32 v40, 3, v%d' % vLANE); a('v_and_b32 v41, 7, v%d' % vLANE); a('v_bfe_u32 v42, v%d, 4, 1' % vLANE)
    a('s_mul_i32 s%d, s%d, 57344' % (sT0, sW))
    a('v_lshlrev_b32 v43, 10, v40'); a('v_add_u32 v43, s%d, v43' % sT0)
    a('v_lshrrev_b32 v44, 1, v40'); a('v_xor_b32 v44, v44, v41')
    a('s_lshl_b32 s%d, s%d, 2' % (sT1, sP)); a('v_xor_b32 v44, s%d, v44' % sT1)
    a('v_xor_b32 v45, 4, v44')
    a('v_lshl_add_u32 v44, v44, 4, v43'); a('v_lshl_add_u32 v45, v45, 4, v43')
    for j in range(7): a('v_add_u32 v%d, %d, v%d' % (vDX + j, 8192 * j - 1024 * (j & 3), 44 + (j & 1)))
    a('v_lshlrev_b32 v44, 1, v42'); a('v_xor_b32 v44, v44, v41'); a('v_xor_b32 v44, s%d, v44' % sT1); a('v_lshlrev_b32 v44, 4, v44')
    a('s_lshl_b32 s%d, s%d, 3' % (sT0, sW)); a('v_add_u32 v45, s%d, v40' % sT0)
    a('v_lshl_add_u32 v46, v45, 13, v44')
    for j in range(4): a('v_add_u32 v%d, %d, v46' % (vDW + j, (j >> 1) * 32 * 8192 + (j & 1) * 128 - 1024 * j + 4096))
    a('s_waitcnt lgkmcnt(0)')
    a('s_mul_i32 s%d, s%d, 229376' % (sT0, sB)); a('s_add_u32 s64, s64, s%d' % sT0); a('s_addc_u32 s65, s65, 0')
    srd(a, SX, 64, 65, '229376')
    a('s_lshl_b32 s%d, s%d, 8' % (sT0, sH)); a('s_add_u32 s70, s70, s%d' % sT0); a('s_addc_u32 s71, s71, 0')
    a('s_sub_u32 s70, s70, 4096'); a('s_subb_u32 s71, s71, 0')
    a('s_sub_u32 s%d, %d, s%d' % (sT0, 4194304 + 4096, sT0))
    srd(a, SWQ, 70, 71, 's%d' % sT0)
    srd(a, SWO, 72, 73, '4194304')
    a('s_lshl_b32 s%d, s%d, 5' % (sT0, sB)); a('s_add_u32 s%d, s%d, s%d' % (sT2, sT0, sH))
    a('s_lshl_b32 s%d, s%d, 17' % (sT0, sT2))
    for r, lo in ((SK, 66), (SV, 68)):
        a('s_add_u32 s%d, s%d, s%d' % (lo, lo, sT0)); a('s_addc_u32 s%d, s%d, 0' % (lo + 1, lo + 1))
        a('s_sub_u32 s%d, s%d, 4096' % (lo, lo)); a('s_subb_u32 s%d, s%d, 0' % (lo + 1, lo + 1))
        srd(a, r, lo, lo + 1, str(131072 + 4096))
    a('s_add_u32 s4, s78, %d' % WT_OFF); a('s_addc_u32 s5, s79, 0'); srd(a, SWT, 4, 5, '4194304')
    if C.stamps:
        a('s_add_u32 s4, s78, %d' % STAMP_OFF); a('s_addc_u32 s5, s79, 0'); srd(a, SST, 4, 5, '0x100000')
    a('s_mul_i32 s%d, s%d, 57344' % (sT0, sT2)); a('s_add_u32 s78, s78, s%d' % sT0); a('s_addc_u32 s79, s79, 0')
    srd(a, SOW, 78, 79, '57344')
    for n in range(8):
        a('s_add_u32 s%d, s3, %d' % (sT0, n)); a('s_and_b32 s%d, s%d, 7' % (sT0, sT0))
        a('s_lshl_b32 s%d, s%d, 7' % (sXO + n, sT0)); a('s_lshl_b32 s%d, s%d, 19' % (sWQO + n, sT0))
        if n == 0: L.extend(dma_chunk(0))
    return L

def p1_setup2():
    L = []; a = lambda t, **k: L.append(I(t, **k))
    a('v_lshl_add_u32 v46, v45, 8, v44')
    for j in range(4): a('v_add_u32 v%d, %d, v46' % (vDV + j, (j >> 1) * 8192 + (j & 1) * 128 - 1024 * j + 4096))
    a('s_lshr_b32 s%d, s%d, 1' % (sT0, sW)); a('s_lshl_b32 s%d, s%d, 2' % (sT0, sT0)); a('s_or_b32 s%d, s%d, s%d' % (sT0, sT0, sP))
    a('v_lshlrev_b32 v44, 1, v42'); a('v_xor_b32 v44, v44, v41'); a('v_xor_b32 v44, s%d, v44' % sT0); a('v_lshlrev_b32 v44, 4, v44')
    a('v_lshl_add_u32 v46, v45, 8, v44')
    for j in range(4): a('v_add_u32 v%d, %d, v46' % (vDK + j, (j >> 1) * 8192 + (j & 1) * 128 - 1024 * j + 4096))
    for n in range(8): a('s_mov_b32 s%d, %d' % (sKVO + n, n * 16384))
    for s in range(4): a('s_mov_b32 s%d, %d' % (sOS + s, s * 14336))
    a('s_mov_b32 s%d, 0x%x' % (sSC, f2u(math.log2(math.e) / math.sqrt(128.0))))
    a('s_mov_b32 s%d, 0x%x' % (sLO, f2u(2.0 ** -30))); a('s_mov_b32 s%d, 0x%x' % (sHI, f2u(2.0 ** 30)))
    a('v_and_b32 v40, 15, v%d' % vLANE); a('v_lshrrev_b32 v41, 4, v%d' % vLANE)
    a('s_lshl_b32 s%d, s%d, 11' % (sT0, sP))
    a('s_xor_b32 s%d, s%d, 2048' % (sT1, sT0))
    a('v_lshrrev_b32 v42, 2, v40'); a('v_and_b32 v43, 3, v40')
    a('v_lshlrev_b32 v44, 12, v42'); a('v_lshl_add_u32 v44, v43, 7, v44')
    a('v_and_b32 v45, 1, v42'); a('v_and_b32 v46, 2, v43'); a('v_or_b32 v45, v45, v46')
    a('v_and_b32 v46, 2, v42'); a('v_lshl_or_b32 v45, v46, 1, v45')
    a('v_lshrrev_b32 v46, 1, v41'); a('v_and_b32 v47, 1, v41'); a('v_lshl_or_b32 v46, v47, 1, v46')
    a('v_xor_b32 v45, v45, v46'); a('v_xor_b32 v46, 4, v45')
    a('v_lshl_add_u32 v45, v45, 4, v44'); a('v_lshl_add_u32 v46, v46, 4, v44')
    for o in range(2):
        for s1 in range(2): a('v_add_u32 v%d, s%d, v%d' % (vKA + 2 * o + s1, sT0 + o, 45 + s1))
    a('v_lshlrev_b32 v44, 12, v41'); a('v_lshl_add_u32 v44, v42, 7, v44'); a('v_lshl_add_u32 v44, v43, 3, v44')
    a('v_add_u32 v44, %d, v44' % VWIN)
    a('v_lshrrev_b32 v45, 1, v42'); a('v_lshl_or_b32 v45, v47, 1, v45')
    for t4 in range(4):
        a('v_xor_b32 v46, %d, v45' % t4); a('v_lshl_add_u32 v46, v46, 5, v44')
        for o in range(2): a('v_add_u32 v%d, s%d, v46' % (vVA + 4 * o + t4, sT0 + o))
    a('v_lshrrev_b32 v45, 1, v40'); a('v_xor_b32 v45, v45, v41')
    a('s_lshl_b32 s%d, s%d, 2' % (sT0, sP)); a('v_xor_b32 v45, s%d, v45' % sT0); a('v_xor_b32 v46, 4, v45')
    a('v_lshlrev_b32 v44, 7, v40'); a('v_lshl_add_u32 v45, v45, 4, v44'); a('v_lshl_add_u32 v46, v46, 4, v44')
    a('s_mul_i32 s%d, s%d, 6144' % (sT0, sW)); a('s_add_u32 s%d, s%d, %d' % (sT0, sT0, XBASE))
    a('v_add_u32 v%d, s%d, v45' % (vXA, sT0)); a('v_add_u32 v%d, s%d, v46' % (vXA + 1, sT0))
    a('s_lshr_b32 s%d, s%d, 1' % (sT1, sW)); a('s_lshl_b32 s%d, s%d, 11' % (sT0, sT1)); a('s_add_u32 s%d, s%d, %d' % (sT0, sT0, XBASE + 12 * 2048))
    a('v_add_u32 v%d, s%d, v45' % (vXS, sT0))
    a('v_lshlrev_b32 v44, 4, v%d' % vLANE)
    a('s_lshl_b32 s%d, s%d, 13' % (sT0, sW)); a('s_add_u32 s%d, s%d, %d' % (sT0, sT0, EXQ))
    a('v_add_u32 v%d, s%d, v44' % (vEXW, sT0)); a('v_xor_b32 v%d, 0x2000, v%d' % (vEXR, vEXW))
    a('s_mul_i32 s%d, s%d, 3072' % (sT0, sW)); a('v_add_u32 v%d, s%d, v44' % (vOO, sT0))
    a('s_lshl_b32 s%d, s%d, 10' % (sT1, sT1)); a('s_mul_i32 s%d, s%d, 28672' % (sT0, sP)); a('s_add_u32 s%d, s%d, s%d' % (sT0, sT0, sT1))
    a('s_add_u32 s%d, s%d, 12288' % (sT0, sT0)); a('v_add_u32 v%d, s%d, v44' % (vOS, sT0))
    a('v_mov_b32 v45, 0x3f803f80'); a('v_cmp_eq_u32 vcc, 0, v43'); a('v_cndmask_b32 v45, 0, v45, vcc')
    for r in range(4): a('v_accvgpr_write_b32 a%d, v45' % (aONE + r))
    a('v_lshl_add_u32 v45, v41, 2, v42'); a('v_lshlrev_b32 v45, 7, v45'); a('v_lshl_add_u32 v45, v43, 5, v45'); a('v_add_u32 v%d, s%d, v45' % (vU, sM4))
    a('s_and_b32 s%d, s2, 1' % sT0); a('s_lshl_b32 s%d, s%d, 2' % (sT0, sT0)); a('s_add_u32 s%d, s%d, s%d' % (sT0, sT0, sW))
    a('s_lshl_b32 s%d, s%d, 7' % (sT0, sT0)); a('s_lshr_b32 s%d, s2, 1' % sT1); a('s_add_u32 s%d, s%d, s%d' % (sT0, sT0, sT1)); a('s_lshl_b32 s%d, s%d, 12' % (sT0, sT0))
    a('v_add_u32 v%d, s%d, v44' % (vU + 1, sT0))
    if C.stamps:
        a('s_lshl_b32 s%d, s2, 2' % sT0); a('s_add_u32 s%d, s%d, s%d' % (sT0, sT0, sW)); a('s_lshl_b32 s%d, s%d, 9' % (sT0, sT0)); a('v_mov_b32 v43, s%d' % sT0)
    return L

def dma_wo():
    L = []; a = lambda t, **k: L.append(I(t, **k))
    a('s_and_b32 s%d, s2, 1' % sT0); a('s_lshl_b32 s%d, s%d, 2' % (sT0, sT0)); a('s_add_u32 s%d, s%d, s%d' % (sT0, sT0, sW)); a('s_lshl_b32 s%d, s%d, 7' % (sT0, sT0))
    a('s_lshr_b32 s%d, s2, 1' % sT1); a('s_lshl_b32 s%d, s%d, 15' % (sT1, sT1)); a('s_add_u32 s%d, s%d, s%d' % (sT0, sT0, sT1))
    a('v_lshlrev_b32 v46, 10, v40'); a('v_lshl_add_u32 v46, v41, 4, v46')
    a('s_mov_b32 m0, s%d' % sM4)
    for j in range(4):
        a('buffer_load_dwordx4 v46, s[%d:%d], s%d offen offset:%d lds ; tag=wo' % (SWO, SWO + 3, sT0, 1024 * j))
        if j < 3: a('v_add_u32 v46, 7168, v46')
    return L

def dma_chunk(n, lat=None, tok=()):
    st = n % 3; L = []; a = lambda t, **k: L.append(I(t, **k))
    a('s_add_u32 m0, s%d, %d' % (sM4, VWIN + WST[st]), xrd=tok)
    for j in range(4): a('buffer_load_dwordx4 v%d, s[%d:%d], s%d offen offset:%d lds ; tag=c%d' % (vDW + j, SWQ, SWQ + 3, sWQO + n, 1024 * j, n), xrd=tok, lat=lat)
    for j in range(7):
        if j in (0, 4): a('s_add_u32 m0, s%d, %d' % (sM7, XBASE + XST[st] + 1024 * j), xrd=tok)
        a('buffer_load_dwordx4 v%d, s[%d:%d], s%d offen offset:%d lds ; tag=c%d' % (vDX + j, SX, SX + 3, sXO + n, 1024 * (j & 3), n), xrd=tok, lat=lat)
    return L

def dma_kv(which, J, lat=None, tok=('ep',), slot=None, soff=None):
    L = []; a = lambda t, **k: L.append(I(t, **k))
    if which == 'K': base, vd, sr = KWIN + 16384 * (J % 4 if slot is None else slot), vDK, SK
    else: base, vd, sr = VWIN + VSL[J % 4 if slot is None else slot], vDV, SV
    a('s_add_u32 m0, s%d, %d' % (sM4, base), xrd=tok)
    for j in range(4): a('buffer_load_dwordx4 v%d, s[%d:%d], s%d offen offset:%d%s lds ; tag=%s%d' % (vd + j, sr, sr + 3, (sKVO + J) if soff is None else soff, 1024 * j, C.kv_nt, which, J), xrd=tok, lat=lat)
    return L

def barrier(tags):
    w = 'vmcnt(@%s) ' % '|'.join(tags) if tags else ''
    return I('s_waitcnt %slgkmcnt(0)\n    s_barrier' % w, xwr=['ep'], cost=8)

class Ring:
    def __init__(self): self.n = 0
    def next(self):
        r = aF + 4 * (self.n % NAF); self.n += 1; return r

def rd_tfrag(P, ring, o, t, off):
    r = ring.next()
    for e in range(2):
        P.append(I('ds_read_b64_tr_b16 %s, v%d offset:%d' % (d('a', r + 2 * e), vVA + 4 * o + (t & 3), off + (t >> 2) * 1024 + e * 512), xrd=['ep']))
    return r

def QA(t, T): return vO + 16 * t + 4 * T

def qk(P, ring, n, slot, nt, cinit=None, reads_only=None):
    o = n & 1
    for u in range(2):
        for s in range(4):
            r = ring.next()
            P.append(I('ds_read_b128 %s, v%d offset:%d' % (q('a', r), vKA + 2 * o + (s & 1), KWIN + 16384 * slot + (s >> 1) * 1024 + u * 512), xrd=['ep']))
            for T in range(nt):
                sr = vS + 16 * u + 4 * T
                c = q('v', sr) if s else ('0' if cinit is None else q('v', cinit + 4 * T))
                P.append(I('%s %s, %s, %s, %s' % (MF, q('v', sr), q('a', r), q('a', aQ + 16 * T + 4 * s), c)))

def softmax(P, n, nt, pb):
    for u in range(2):
        for T in range(nt):
            sr = vS + 16 * u + 4 * T
            for h2 in range(2):
                P.append(I('v_exp_f32 v%d, v%d' % (sr + 2 * h2, sr + 2 * h2))); P.append(I('v_exp_f32 v%d, v%d' % (sr + 2 * h2 + 1, sr + 2 * h2 + 1)))
                P.append(I('v_cvt_pk_bf16_f32 v%d, v%d, v%d' % (pb + 4 * T + 2 * u + h2, sr + 2 * h2, sr + 2 * h2 + 1)))

def pv(P, ring, n, slot, nt, pb, first):
    o = n & 1
    for T in range(nt):
        P.append(I('%s %s, %s, %s, %s' % (MF, q('a', aL + 4 * T), q('a', aONE), q('v', pb + 4 * T), '0' if first else q('a', aL + 4 * T))))
    for t in range(8):
        r = rd_tfrag(P, ring, o, t, VSL[slot])
        for T in range(nt):
            P.append(I('%s %s, %s, %s, %s' % (MF, q('v', QA(t, T)), q('a', r), q('v', pb + 4 * T), '0' if first else q('v', QA(t, T)))))

def epi_shared_write(P):
    a = lambda t, **k: P.append(I(t, **k))
    for t in range(8): a('ds_write_b128 v%d, %s offset:%d' % (vEXW, q('v', QA(t, 3)), EXO - EXQ + 1024 * t), xrd=['ep'])

def epilogue(P, check=True):
    a = lambda t, **k: P.append(I(t, **k))
    LV = vU
    for T in range(4): a('v_accvgpr_read_b32 v%d, a%d' % (LV + T, aL + 4 * T))
    FL = vU + 4
    if check:
        a('v_min3_f32 v%d, v%d, v%d, v%d' % (FL, LV, LV + 1, LV + 2)); a('v_min_f32 v%d, v%d, v%d' % (FL, FL, LV + 3))
        a('v_add_f32 v%d, v%d, v%d' % (FL + 1, LV, LV + 1)); a('v_add_f32 v%d, v%d, v%d' % (FL + 2, LV + 2, LV + 3)); a('v_add_f32 v%d, v%d, v%d' % (FL + 1, FL + 1, FL + 2))
        a('v_cmp_le_f32 vcc, s%d, v%d' % (sLO, FL)); a('v_cndmask_b32 v%d, 1, 0, vcc' % FL)
        a('v_cmp_ge_f32 vcc, s%d, v%d' % (sHI, FL + 1)); a('v_cndmask_b32 v%d, 1, v%d, vcc' % (FL, FL))
        if C.force_slow: a('v_mov_b32 v%d, 1' % FL)
    else:
        a('v_mov_b32 v%d, 0' % FL)
    a('v_lshlrev_b32 v%d, 3, v0' % (FL + 4)); a('v_mov_b32 v%d, v%d' % (FL + 1, LV + 3))
    a('ds_write_b64 v%d, %s' % (FL + 4, d('v', FL)), xrd=['ep'])
    P.append(barrier([]))
    a('v_xor_b32 v%d, 0x200, v%d' % (FL + 5, FL + 4)); a('v_xor_b32 v%d, 0x400, v%d' % (FL + 6, FL + 4)); a('v_xor_b32 v%d, 0x600, v%d' % (FL + 7, FL + 4))
    a('ds_read_b64 %s, v%d' % (d('v', FL + 2), FL + 5), xrd=['ep'])
    a('ds_read_b32 v%d, v%d' % (FL + 6, FL + 6), xrd=['ep']); a('ds_read_b32 v%d, v%d' % (FL + 7, FL + 7), xrd=['ep'])
    a('s_lshl_b32 s%d, s%d, 12' % (sT0, sP)); a('v_add_u32 v%d, s%d, v%d' % (FL + 4, sT0, vEXW)); a('v_xor_b32 v%d, 0x2000, v%d' % (FL + 5, FL + 4))
    for k in range(4):
        a('ds_read_b128 %s, v%d offset:%d' % (q('v', vS + 4 * k), FL + 4, EXO - EXQ + 1024 * k), xrd=['ep'])
        a('ds_read_b128 %s, v%d offset:%d' % (q('v', vS + 16 + 4 * k), FL + 5, EXO - EXQ + 1024 * k), xrd=['ep'])
    RC = vU + 12
    for T in range(3): a('v_rcp_f32 v%d, v%d' % (RC + T, LV + T))
    def norm_store(src0, src1, T, voff, soff, imm):
        rp = RC + (T & ~1); sel = 'op_sel:[0,1] op_sel_hi:[1,1]' if T & 1 else 'op_sel_hi:[1,0]'
        for src in (src0, src1):
            for h2 in range(2): a('v_pk_mul_f32 %s, %s, %s %s' % (d('v', src + 2 * h2), d('v', src + 2 * h2), d('v', rp), sel))
        a('v_cvt_pk_bf16_f32 v%d, v%d, v%d' % (src0, src0, src0 + 1)); a('v_cvt_pk_bf16_f32 v%d, v%d, v%d' % (src0 + 1, src0 + 2, src0 + 3))
        a('v_cvt_pk_bf16_f32 v%d, v%d, v%d' % (src0 + 2, src1, src1 + 1)); a('v_cvt_pk_bf16_f32 v%d, v%d, v%d' % (src0 + 3, src1 + 2, src1 + 3))
        a('buffer_store_dwordx4 %s, v%d, s[%d:%d], s%d offen offset:%d%s' % (q('v', src0), voff, SOW, SOW + 3, soff, imm, C.st_mod))
    a('v_add_f32 v%d, v%d, v%d' % (LV + 3, LV + 3, FL + 3)); a('v_rcp_f32 v%d, v%d' % (vT, LV + 3))
    for s in range(4):
        for T in range(3): norm_store(QA(2 * s, T), QA(2 * s + 1, T), T, vOO, sOS + s, 1024 * T)
    for k in range(8): a('v_pk_add_f32 %s, %s, %s' % (d('v', vS + 2 * k), d('v', vS + 2 * k), d('v', vS + 16 + 2 * k)))
    RC = vT
    for s in range(2): norm_store(vS + 8 * s, vS + 8 * s + 4, 0, vOS, sOS + s, 0)
    a('v_or3_b32 v%d, v%d, v%d, v%d' % (FL, FL, FL + 2, FL + 6)); a('v_or_b32 v%d, v%d, v%d' % (FL, FL, FL + 7))
    a('v_cmp_ne_u32 vcc, 0, v%d' % FL)

def phase1_main(stamp):
    P = []; a = lambda t, **k: P.append(I(t, **k)); ring = Ring()
    DL = 500
    for n in range(8):
        st = n % 3
        P.append(barrier(['c%d' % n] + (['wo'] if n == 1 else [])))
        if n in (0, 2, 4, 6): stamp(P)
        if 1 <= n <= 5: P.extend(dma_chunk(n + 2, lat=DL, tok=('ep',)))
        if n == 1:
            for u in range(4):
                for e in range(2): a('ds_read_b64_tr_b16 %s, v%d offset:%d' % (d('v', vS + 4 * u + 2 * e), vU, 8 * u + 2048 * e), xrd=['ep'])
            for u in range(4): a('buffer_store_dwordx4 %s, v%d, s[%d:%d], 0 offen offset:%d%s' % (q('v', vS + 4 * u), vU + 1, SWT, SWT + 3, 1024 * u, C.st_mod), xrd=['ep'])
        if n == 2: P.extend(dma_kv('K', 0, lat=100))
        if n == 6:
            for w_, J in (('V', 0), ('K', 1), ('K', 2)): P.extend(dma_kv(w_, J, lat=DL))
        if n == 7: P.extend(dma_kv('V', 1, lat=DL))
        for o in range(2):
            nt = 4 - o; xf = aX + 16 * o
            for T in range(nt):
                if T < 3: a('ds_read_b128 %s, v%d offset:%d' % (q('a', xf + 4 * T), vXA + o, XST[st] + 2048 * T), xrd=['ep'])
                else: a('ds_read_b128 %s, v%d offset:%d' % (q('a', xf + 4 * T), vXS, XST[st]), xrd=['ep'])
            for t in range(8):
                r = rd_tfrag(P, ring, o, t, WST[st])
                for T in range(nt):
                    a('%s %s, %s, %s, %s' % (MF, q('v', QA(t, T)), q('a', r), q('a', xf + 4 * T), '0' if (n == 0 and o == 0) else q('v', QA(t, T))))
            if n == 7 and o == 0:
                for t in range(8): a('ds_write_b128 v%d, %s offset:%d' % (vEXW, q('v', QA(t, 3)), 1024 * t), xrd=['ep'])
    P.append(barrier(['K0']))
    stamp(P)
    P.extend(dma_kv('V', 2, lat=DL)); P.extend(dma_kv('V', 3, lat=DL))
    for t in range(8): a('ds_read_b128 %s, v%d offset:%d' % (q('v', vS + 4 * t), vEXR, 1024 * t), xrd=['ep'])
    for t in range(8):
        for h2 in range(2): a('v_pk_add_f32 %s, %s, %s' % (d('v', QA(t, 3) + 2 * h2), d('v', QA(t, 3) + 2 * h2), d('v', vS + 4 * t + 2 * h2)))
    a('v_mov_b32 v%d, s%d' % (vT, sSC))
    for s in range(4):
        for T in range(4):
            x, y = QA(2 * s, T), QA(2 * s + 1, T)
            for src in (x, y):
                for h2 in range(2): a('v_pk_mul_f32 %s, %s, %s op_sel_hi:[1,0]' % (d('v', src + 2 * h2), d('v', src + 2 * h2), d('v', vT)))
            a('v_cvt_pk_bf16_f32 v%d, v%d, v%d' % (x, x, x + 1)); a('v_cvt_pk_bf16_f32 v%d, v%d, v%d' % (x + 1, x + 2, x + 3))
            a('v_cvt_pk_bf16_f32 v%d, v%d, v%d' % (y, y, y + 1)); a('v_cvt_pk_bf16_f32 v%d, v%d, v%d' % (y + 1, y + 2, y + 3))
            a('v_permlane16_swap_b32 v%d, v%d' % (x, y)); a('v_permlane16_swap_b32 v%d, v%d' % (x + 1, y + 1))
            for k, r in enumerate((x, x + 1, y, y + 1)): a('v_accvgpr_write_b32 a%d, v%d' % (aQ + 16 * T + 4 * s + k, r))
    qk(P, ring, 0, 0, 4); softmax(P, 0, 4, vP)
    for J in range(8):
        qk(P, ring, 2 * J + 1, J % 4, 3)
        P.append(barrier(['V%d' % J] + (['K%d' % (J + 1)] if J < 7 else [])))
        if J in (0, 2, 4, 6): stamp(P)
        if J == 0: P.extend(dma_kv('K', 3, lat=1200))
        if 1 <= J <= 4: P.extend(dma_kv('V', J + 3, lat=1200))
        if J <= 3: P.extend(dma_kv('K', J + 4, lat=1200))
        softmax(P, 2 * J + 1, 3, vP + 16)
        pv(P, ring, 2 * J, J % 4, 4, vP, J == 0)
        if J < 7:
            qk(P, ring, 2 * J + 2, (J + 1) % 4, 4); softmax(P, 2 * J + 2, 4, vP)
        else: epi_shared_write(P)
        pv(P, ring, 2 * J + 1, J % 4, 3, vP + 16, False)
    epilogue(P)
    return P

def phase1_slow():
    out = []
    NEG = vP + 16
    def reg(P, name): out.extend(schedule(P, name=name))
    A = lambda t, **k: out.append(I(t, **k))
    A('L1_slow:'); A('s_waitcnt vmcnt(0) lgkmcnt(0)'); A('s_nop 7'); A('s_barrier')
    for r in range(16): A('v_mov_b32 v%d, 0xff800000' % (NEG + r))
    A('s_mov_b32 s%d, 0' % sOFF)
    A('L1_max:')
    P = dma_kv('K', 0, tok=(), slot=0, soff=sOFF); P.append(I('s_waitcnt vmcnt(0)\n    s_barrier', xwr=['ep', 'm0'], cost=8)); ring = Ring()
    for o in range(2):
        qk(P, ring, o, 0, 4)
        for T in range(4):
            for r in range(4): P.append(I('v_max3_f32 v%d, v%d, v%d, v%d' % (NEG + 4 * T + r, NEG + 4 * T + r, vS + 4 * T + r, vS + 16 + 4 * T + r)))
    reg(P, 'slowmax')
    A('s_waitcnt lgkmcnt(0)'); A('s_barrier'); A('s_add_u32 s%d, s%d, 16384' % (sOFF, sOFF)); A('s_cmp_lt_u32 s%d, 131072' % sOFF); A('s_nop 7'); A('s_cbranch_scc1 L1_max')
    for T in range(4):
        m = NEG + 4 * T
        A('v_max3_f32 v%d, v%d, v%d, v%d' % (m, m, m + 1, m + 2)); A('v_max_f32 v%d, v%d, v%d' % (m, m, m + 3))
        for sw in ('v_permlane16_swap_b32', 'v_permlane32_swap_b32'):
            A('v_mov_b32 v%d, v%d' % (m + 1, m)); A('%s v%d, v%d' % (sw, m, m + 1)); A('v_max_f32 v%d, v%d, v%d' % (m, m, m + 1))
        A('v_sub_f32 v%d, 0, v%d' % (m, m))
        for r in range(1, 4): A('v_mov_b32 v%d, v%d' % (m + r, m))
    for r in range(128): A('v_mov_b32 v%d, 0' % (vO + r))
    for r in range(16): A('v_accvgpr_write_b32 a%d, 0' % (aL + r))
    A('s_mov_b32 s%d, 0' % sOFF)
    A('L1_att:')
    P = dma_kv('K', 0, tok=(), slot=1, soff=sOFF) + dma_kv('V', 0, tok=(), slot=0, soff=sOFF); P.append(I('s_waitcnt vmcnt(0)\n    s_barrier', xwr=['ep', 'm0'], cost=8)); ring = Ring()
    for o in range(2):
        qk(P, ring, o, 1, 4 - o, cinit=NEG); softmax(P, o, 4 - o, vP); pv(P, ring, o, 0, 4 - o, vP, False)
    reg(P, 'slowatt')
    A('s_waitcnt lgkmcnt(0)'); A('s_barrier'); A('s_add_u32 s%d, s%d, 16384' % (sOFF, sOFF)); A('s_cmp_lt_u32 s%d, 131072' % sOFF); A('s_nop 7'); A('s_cbranch_scc1 L1_att')
    P = []; epi_shared_write(P); epilogue(P, check=False); reg(P, 'slowepi')
    A('s_branch L1_done')
    return out

def kernel1():
    stamp = Stamper()
    L = p1_setup() + dma_wo() + dma_chunk(1) + dma_chunk(2) + p1_setup2()
    stamp.entry(L); stamp(L)
    L += schedule(phase1_main(stamp), verbose=True, name='phase1')
    L.append(I('s_cbranch_vccnz L1_slow'))
    L.append(I('L1_done:'))
    E = []; stamp(E); L += E
    if C.stamps:
        L.append(I('s_waitcnt vmcnt(0)')); E = []; stamp(E); L += E
    L.append(I('L1_end:')); L.append(I('s_endpgm'))
    L = fix_hazards(vm_waits(L), verbose=True, name='k1')
    S = fix_hazards(vm_waits(phase1_slow()), verbose=True, name='slow')
    txt = text(L).replace('    s_cbranch_vccnz L1_slow', '    s_nop 4\n    s_cbranch_vccnz L1_slow')
    return txt + '\n' + text(S)

def kernel2():
    L = []; a = lambda t, **k: L.append(I(t, **k))
    stamp = Stamper(); stamp.n = 16
    if C.stamps: a('s_memtime s[94:95]'); a('s_memrealtime s[96:97]')
    a('s_cmp_ge_u32 s2, 256'); a('s_cbranch_scc1 L2_end')
    a('s_load_dwordx4 s[4:7], s[0:1], 40'); a('s_load_dwordx2 s[78:79], s[0:1], 56')
    if C.warm_kb:
        a('s_getpc_b64 s[70:71]'); a('v_lshlrev_b32 v40, 5, v0'); a('global_load_dword v255, v40, s[70:71]')
    a('v_lshrrev_b32 v40, 6, v0'); a('v_and_b32 v%d, 63, v0' % vLANE); a('v_readfirstlane_b32 s%d, v40' % sW)
    sR, sCB = sH, sM4
    a('s_and_b32 s%d, s2, 7' % sB); a('s_bfe_u32 s%d, s2, 0x20003' % sR); a('s_lshr_b32 s%d, s2, 5' % sCB); a('s_and_b32 s%d, s%d, 1' % (sP, sR))
    a('v_lshlrev_b32 v44, 4, v%d' % vLANE)
    a('s_mul_i32 s%d, s%d, %d' % (sT0, sW, 32 * 14336)); a('s_mul_i32 s%d, s%d, 3072' % (sT1, sR)); a('s_add_u32 s%d, s%d, s%d' % (sT1, sT1, sT0)); a('v_add_u32 v2, s%d, v44' % sT1)
    a('s_lshr_b32 s%d, s%d, 1' % (sT1, sR)); a('s_lshl_b32 s%d, s%d, 10' % (sT1, sT1)); a('s_add_u32 s%d, s%d, s%d' % (sT1, sT1, sT0)); a('s_add_u32 s%d, s%d, 12288' % (sT1, sT1)); a('v_add_u32 v3, s%d, v44' % sT1)
    a('s_lshl_b32 s%d, s%d, 19' % (sT0, sCB)); a('s_lshl_b32 s%d, s%d, 17' % (sT1, sW)); a('s_add_u32 s%d, s%d, s%d' % (sT0, sT0, sT1))
    a('s_lshl_b32 s%d, s%d, 11' % (sT1, sP)); a('s_add_u32 s%d, s%d, s%d' % (sT0, sT0, sT1)); a('v_add_u32 v4, s%d, v44' % sT0); a('v_xor_b32 v5, 0x800, v4')
    a('s_waitcnt lgkmcnt(0)')
    a('s_add_u32 s70, s78, %d' % WT_OFF); a('s_addc_u32 s71, s79, 0'); srd(a, SWT, 70, 71, '4194304')
    if C.stamps:
        a('s_add_u32 s70, s78, %d' % STAMP_OFF); a('s_addc_u32 s71, s79, 0'); srd(a, SST, 70, 71, '0x100000')
        a('s_lshl_b32 s%d, s2, 2' % sT0); a('s_add_u32 s%d, s%d, s%d' % (sT0, sT0, sW)); a('s_lshl_b32 s%d, s%d, 9' % (sT0, sT0)); a('v_mov_b32 v43, s%d' % sT0)
    a('s_mul_i32 s%d, s%d, %d' % (sT0, sB, 32 * 57344)); a('s_add_u32 s78, s78, s%d' % sT0); a('s_addc_u32 s79, s79, 0'); srd(a, SOW, 78, 79, str(32 * 57344))
    a('s_mul_i32 s%d, s%d, 229376' % (sT0, sB)); a('s_add_u32 s4, s4, s%d' % sT0); a('s_addc_u32 s5, s5, 0'); srd(a, SOUT, 4, 5, '229376')
    a('s_mov_b32 s64, 0'); a('s_mov_b32 s65, 0')
    stamp.entry(L)
    DEPTH = 7
    ACC = 64
    def loads(k):
        b = 32 * (k % 8)
        for u in range(4): a('buffer_load_dwordx4 %s, v%d, s[%d:%d], s65 offen offset:%d' % (q('a', b + 4 * u), 4 + (u >> 1), SWT, SWT + 3, 1024 * (u & 1)))
        for T in range(3): a('buffer_load_dwordx4 %s, v2, s[%d:%d], s64 offen offset:%d' % (q('a', b + 16 + 4 * T), SOW, SOW + 3, 1024 * T))
        a('buffer_load_dwordx4 %s, v3, s[%d:%d], s64 offen' % (q('a', b + 28), SOW, SOW + 3))
        a('s_add_u32 s64, s64, 14336'); a('s_add_u32 s65, s65, 4096')
    for k in range(DEPTH): loads(k)
    for k in range(32):
        b = 32 * (k % 8)
        n0 = len(L)
        if k + DEPTH < 32: loads(k + DEPTH)
        ld = L[n0:]; del L[n0:]
        mf = []
        for T in (3, 0, 1, 2):
            for u in range(4 if T < 3 else 2):
                ac = ACC + 16 * T + 4 * u
                mf.append(I('%s %s, %s, %s, %s' % (MF, q('v', ac), q('a', b + 4 * u), q('a', b + 16 + 4 * T), '0' if k == 0 else q('v', ac))))
        for j, m in enumerate(mf):
            L.append(m)
            if j < len(ld): L.append(ld[j])
    stamp(L)
    a('s_mul_i32 s%d, s%d, 16384' % (sT0, sW)); a('v_lshlrev_b32 v44, 4, v%d' % vLANE); a('v_add_u32 v6, s%d, v44' % sT0)
    a('s_lshl_b32 s%d, s%d, 12' % (sT0, sW)); a('v_add_u32 v7, s%d, v44' % sT0)
    for j in range(14): a('ds_write_b128 v6, %s offset:%d' % (q('v', ACC + 4 * j), 1024 * j))
    a('s_mul_i32 s%d, s%d, 3' % (sT0, sR)); a('s_add_u32 s%d, s%d, s%d' % (sT0, sT0, sW))
    a('s_lshr_b32 s%d, s%d, 1' % (sT1, sR)); a('s_add_u32 s%d, s%d, 12' % (sT1, sT1))
    a('s_cmp_eq_u32 s%d, 3' % sW); a('s_cselect_b32 s%d, s%d, s%d' % (sT0, sT1, sT0))
    a('s_cselect_b32 s%d, 0x100000, 0' % sT2)
    a('s_lshl_b32 s%d, s%d, 14' % (sT0, sT0)); a('s_lshl_b32 s%d, s%d, 7' % (sT1, sCB)); a('s_add_u32 s%d, s%d, s%d' % (sT0, sT0, sT1))
    a('s_lshl_b32 s%d, s%d, 4' % (sT1, sP)); a('s_add_u32 s%d, s%d, s%d' % (sT0, sT0, sT1))
    a('v_and_b32 v8, 15, v%d' % vLANE); a('v_lshrrev_b32 v9, 4, v%d' % vLANE); a('v_lshlrev_b32 v8, 10, v8'); a('v_lshl_add_u32 v8, v9, 5, v8')
    a('v_add_u32 v8, s%d, v8' % sT0); a('v_xor_b32 v9, 16, v8')
    a('s_waitcnt lgkmcnt(0)'); a('s_barrier')
    for sw in range(4):
        for u in range(4): a('ds_read_b128 %s, v7 offset:%d' % (q('v', 128 + 16 * sw + 4 * u), 16384 * sw + 1024 * u))
    for k in range(8): a('v_pk_add_f32 %s, %s, %s' % (d('v', 128 + 2 * k), d('v', 128 + 2 * k), d('v', 144 + 2 * k)))
    for k in range(8): a('v_pk_add_f32 %s, %s, %s' % (d('v', 160 + 2 * k), d('v', 160 + 2 * k), d('v', 176 + 2 * k)))
    for k in range(8): a('v_pk_add_f32 %s, %s, %s' % (d('v', 128 + 2 * k), d('v', 128 + 2 * k), d('v', 160 + 2 * k)))
    for k in range(8): a('v_cvt_pk_bf16_f32 v%d, v%d, v%d' % (144 + k, 128 + 2 * k, 129 + 2 * k))
    a('buffer_store_dwordx4 v[144:147], v8, s[%d:%d], 0 offen' % (SOUT, SOUT + 3))
    a('buffer_store_dwordx4 v[148:151], v9, s[%d:%d], s%d offen' % (SOUT, SOUT + 3, sT2))
    if C.stamps:
        a('s_waitcnt vmcnt(0)'); stamp(L)
    a('L2_end:'); a('s_endpgm')
    return text(fix_hazards(lgkm_waits(vm_waits(L)), verbose=True, name='k2'))

def build(path):
    k1 = kernel1(); k2 = kernel2()
    s = kernel_file([dict(name='attn_kernel', grid=256, block=256, lds=163840, body=k1, vgpr=512, accum=256),
                     dict(name='oproj_kernel', grid=256, block=256, lds=65536, body=k2 + '\n.fill 2048, 4, 0xbf800000', vgpr=512, accum=256)])
    open(path, 'w').write(s)

if __name__ == '__main__':
    for kv in sys.argv[2:]:
        k, v = kv.split('='); setattr(C, k, eval(v))
    build(sys.argv[1])
```

```python
import sys, math, struct
from asmlib import *
from sched import *

def f2u(x): return struct.unpack('<I', struct.pack('<f', x))[0]
def q(p, b): return '%s[%d:%d]' % (p, b, b + 3)
def d(p, b): return '%s[%d:%d]' % (p, b, b + 1)
MF = 'v_mfma_f32_16x16x32_bf16'

class Cfg:
    stagger = True
    stamps = False
    warm_kb = 40
    kv_nt = ''
    st_mod = ''
    force_slow = False
C = Cfg

SX, SK, SV, SWQ, SWO, SOW, SWT, SOUT = 8, 12, 16, 20, 24, 28, 32, 36
sW, sP, sB, sH, sM4, sM7, sT0, sT1, sT2, sSC = 40, 41, 42, 43, 44, 45, 46, 47, 48, 49
sLO, sHI, sCNT, sOFF = 50, 51, 52, 53
sOS = 54
SST = 58+2
sXO, sWQO, sKVO = 64, 72, 80
sTM = 90
vLANE = 1
vKA, vVA, vDK, vDV, vDW, vDX, vXA, vXS, vEXW, vEXR, vOO, vOS = 2, 6, 14, 18, 22, 26, 33, 35, 36, 37, 38, 39
vT = 40
vS, vP, vU, vO = 48, 80, 112, 128
aQ, aL, aONE, aX, aF = 0, 64, 80, 84, 112
NAF = 16
KWIN = 0
XBASE = 28 * 1024
XST = {2: 0, 0: 28672, 1: 57344}
VWIN = 96 * 1024
WST = {0: 16384, 1: 32768, 2: 49152}
VSL = [49152, 16384, 32768, 0]
EXQ = 48 * 1024
EXO = 64 * 1024
OWS_BYTES = 8 * 32 * 56 * 1024
WT_OFF = 16 * 1024 * 1024
STAMP_OFF = 32 * 1024 * 1024

def srd(a, r, lo, hi, nrec):
    a('s_mov_b32 s%d, s%d' % (r, lo)); a('s_mov_b32 s%d, s%d' % (r + 1, hi))
    a('s_mov_b32 s%d, %s' % (r + 2, nrec)); a('s_mov_b32 s%d, 0x20000' % (r + 3))

class Stamper:
    def __init__(self): self.n = 0
    def entry(self, P):
        if not C.stamps: return
        n = self.n; self.n += 1
        for k in range(4): P.append(I('v_mov_b32 v%d, s%d' % (44 + k, 94 + k)))
        P.append(I('buffer_store_dwordx4 v[44:47], v43, s[%d:%d], 0 offen offset:%d' % (SST, SST + 3, n * 16)))
        P.append(I('s_nop 1'))
    def __call__(self, P):
        if not C.stamps: return
        n = self.n; self.n += 1
        P.append(I('s_memtime s[%d:%d]\n    s_memrealtime s[%d:%d]\n    s_waitcnt lgkmcnt(0)\n    v_mov_b32 v44, s%d\n    v_mov_b32 v45, s%d\n    v_mov_b32 v46, s%d\n    v_mov_b32 v47, s%d'
                   % (sTM, sTM+1, sTM+2, sTM+3, sTM, sTM+1, sTM+2, sTM+3), xrd=['ep'], xwr=['v44','v45','v46','v47', 'ep']))
        P.append(I('buffer_store_dwordx4 v[44:47], v43, s[%d:%d], 0 offen offset:%d' % (SST, SST + 3, n * 16), xrd=['ep']))

def p1_setup():
    L = []; a = lambda t, **k: L.append(I(t, **k))
    if C.stamps: a('s_memtime s[94:95]'); a('s_memrealtime s[96:97]')
    a('s_cmp_ge_u32 s2, 256'); a('s_cbranch_scc1 L1_end')
    a('s_load_dwordx16 s[64:79], s[0:1], 0')
    if C.warm_kb:
        a('s_getpc_b64 s[4:5]')
        a('v_lshlrev_b32 v40, 7, v0')
        for i in range((C.warm_kb + 31) // 32):
            if (i + 1) * 32 > C.warm_kb:
                a('v_min_u32 v40, %d, v40' % (C.warm_kb * 1024 - 128))
            a('global_load_dword v%d, v40, s[4:5]' % (255 - i))
            a('v_add_u32 v40, 0x8000, v40')
    a('v_lshrrev_b32 v40, 6, v0'); a('v_and_b32 v%d, 63, v0' % vLANE)
    a('v_readfirstlane_b32 s%d, v40' % sW)
    a('s_and_b32 s%d, s2, 1' % sT0); a('s_lshl_b32 s%d, s%d, 2' % (sT0, sT0))
    a('s_bfe_u32 s%d, s2, 0x20003' % sT1)
    a('s_add_u32 s%d, s%d, s%d' % (sB, sT0, sT1))
    a('s_bfe_u32 s%d, s2, 0x20001' % sT0); a('s_lshl_b32 s%d, s%d, 3' % (sT0, sT0))
    a('s_lshr_b32 s%d, s2, 5' % sT2)
    a('s_add_u32 s%d, s%d, s%d' % (sH, sT0, sT2))
    a('s_lshl_b32 s%d, s%d, 1' % (sT1, sT1)); a('s_add_u32 s3, s%d, s%d' % (sT1, sT2))
    if not C.stagger: a('s_mov_b32 s3, 0')
    a('s_and_b32 s%d, s%d, 1' % (sP, sW))
    a('s_lshl_b32 s%d, s%d, 12' % (sM4, sW)); a('s_mul_i32 s%d, s%d, 7168' % (sM7, sW))
    a('v_lshrrev_b32 v40, 3, v%d' % vLANE); a('v_and_b32 v41, 7, v%d' % vLANE); a('v_bfe_u32 v42, v%d, 4, 1' % vLANE)
    a('s_mul_i32 s%d, s%d, 57344' % (sT0, sW))
    a('v_lshlrev_b32 v43, 10, v40'); a('v_add_u32 v43, s%d, v43' % sT0)
    a('v_lshrrev_b32 v44, 1, v40'); a('v_xor_b32 v44, v44, v41')
    a('s_lshl_b32 s%d, s%d, 2' % (sT1, sP)); a('v_xor_b32 v44, s%d, v44' % sT1)
    a('v_xor_b32 v45, 4, v44')
    a('v_lshl_add_u32 v44, v44, 4, v43'); a('v_lshl_add_u32 v45, v45, 4, v43')
    for j in range(7): a('v_add_u32 v%d, %d, v%d' % (vDX + j, 8192 * j - 1024 * (j & 3), 44 + (j & 1)))
    a('v_lshlrev_b32 v44, 1, v42'); a('v_xor_b32 v44, v44, v41'); a('v_xor_b32 v44, s%d, v44' % sT1); a('v_lshlrev_b32 v44, 4, v44')
    a('s_lshl_b32 s%d, s%d, 3' % (sT0, sW)); a('v_add_u32 v45, s%d, v40' % sT0)
    a('v_lshl_add_u32 v46, v45, 13, v44')
    for j in range(4): a('v_add_u32 v%d, %d, v46' % (vDW + j, (j >> 1) * 32 * 8192 + (j & 1) * 128 - 1024 * j + 4096))
    a('s_waitcnt lgkmcnt(0)')
    if C.stamps: a('s_memtime s[98:99]')
    a('s_mul_i32 s%d, s%d, 229376' % (sT0, sB)); a('s_add_u32 s64, s64, s%d' % sT0); a('s_addc_u32 s65, s65, 0')
    srd(a, SX, 64, 65, '229376')
    a('s_lshl_b32 s%d, s%d, 8' % (sT0, sH)); a('s_add_u32 s70, s70, s%d' % sT0); a('s_addc_u32 s71, s71, 0')
    a('s_sub_u32 s70, s70, 4096'); a('s_subb_u32 s71, s71, 0')
    a('s_sub_u32 s%d, %d, s%d' % (sT0, 4194304 + 4096, sT0))
    srd(a, SWQ, 70, 71, 's%d' % sT0)
    srd(a, SWO, 72, 73, '4194304')
    a('s_lshl_b32 s%d, s%d, 5' % (sT0, sB)); a('s_add_u32 s%d, s%d, s%d' % (sT2, sT0, sH))
    a('s_lshl_b32 s%d, s%d, 17' % (sT0, sT2))
    for r, lo in ((SK, 66), (SV, 68)):
        a('s_add_u32 s%d, s%d, s%d' % (lo, lo, sT0)); a('s_addc_u32 s%d, s%d, 0' % (lo + 1, lo + 1))
        a('s_sub_u32 s%d, s%d, 4096' % (lo, lo)); a('s_subb_u32 s%d, s%d, 0' % (lo + 1, lo + 1))
        srd(a, r, lo, lo + 1, str(131072 + 4096))
    a('s_add_u32 s4, s78, %d' % WT_OFF); a('s_addc_u32 s5, s79, 0'); srd(a, SWT, 4, 5, '4194304')
    if C.stamps:
        a('s_add_u32 s4, s78, %d' % STAMP_OFF); a('s_addc_u32 s5, s79, 0'); srd(a, SST, 4, 5, '0x100000')
    a('s_mul_i32 s%d, s%d, 57344' % (sT0, sT2)); a('s_add_u32 s78, s78, s%d' % sT0); a('s_addc_u32 s79, s79, 0')
    srd(a, SOW, 78, 79, '57344')
    for n in range(8):
        a('s_add_u32 s%d, s3, %d' % (sT0, n)); a('s_and_b32 s%d, s%d, 7' % (sT0, sT0))
        a('s_lshl_b32 s%d, s%d, 7' % (sXO + n, sT0)); a('s_lshl_b32 s%d, s%d, 19' % (sWQO + n, sT0))
        if n == 0:
            L.extend(dma_chunk(0))
            if C.stamps: a('s_memtime s[100:101]')
    return L

def p1_setup2():
    L = []; a = lambda t, **k: L.append(I(t, **k))
    a('v_lshl_add_u32 v46, v45, 8, v44')
    for j in range(4): a('v_add_u32 v%d, %d, v46' % (vDV + j, (j >> 1) * 8192 + (j & 1) * 128 - 1024 * j + 4096))
    a('s_lshr_b32 s%d, s%d, 1' % (sT0, sW)); a('s_lshl_b32 s%d, s%d, 2' % (sT0, sT0)); a('s_or_b32 s%d, s%d, s%d' % (sT0, sT0, sP))
    a('v_lshlrev_b32 v44, 1, v42'); a('v_xor_b32 v44, v44, v41'); a('v_xor_b32 v44, s%d, v44' % sT0); a('v_lshlrev_b32 v44, 4, v44')
    a('v_lshl_add_u32 v46, v45, 8, v44')
    for j in range(4): a('v_add_u32 v%d, %d, v46' % (vDK + j, (j >> 1) * 8192 + (j & 1) * 128 - 1024 * j + 4096))
    for n in range(8): a('s_mov_b32 s%d, %d' % (sKVO + n, n * 16384))
    for s in range(4): a('s_mov_b32 s%d, %d' % (sOS + s, s * 14336))
    a('s_mov_b32 s%d, 0x%x' % (sSC, f2u(math.log2(math.e) / math.sqrt(128.0))))
    a('s_mov_b32 s%d, 0x%x' % (sLO, f2u(2.0 ** -30))); a('s_mov_b32 s%d, 0x%x' % (sHI, f2u(2.0 ** 30)))
    a('v_and_b32 v40, 15, v%d' % vLANE); a('v_lshrrev_b32 v41, 4, v%d' % vLANE)
    a('s_lshl_b32 s%d, s%d, 11' % (sT0, sP))
    a('s_xor_b32 s%d, s%d, 2048' % (sT1, sT0))
    a('v_lshrrev_b32 v42, 2, v40'); a('v_and_b32 v43, 3, v40')
    a('v_lshlrev_b32 v44, 12, v42'); a('v_lshl_add_u32 v44, v43, 7, v44')
    a('v_and_b32 v45, 1, v42'); a('v_and_b32 v46, 2, v43'); a('v_or_b32 v45, v45, v46')
    a('v_and_b32 v46, 2, v42'); a('v_lshl_or_b32 v45, v46, 1, v45')
    a('v_lshrrev_b32 v46, 1, v41'); a('v_and_b32 v47, 1, v41'); a('v_lshl_or_b32 v46, v47, 1, v46')
    a('v_xor_b32 v45, v45, v46'); a('v_xor_b32 v46, 4, v45')
    a('v_lshl_add_u32 v45, v45, 4, v44'); a('v_lshl_add_u32 v46, v46, 4, v44')
    for o in range(2):
        for s1 in range(2): a('v_add_u32 v%d, s%d, v%d' % (vKA + 2 * o + s1, sT0 + o, 45 + s1))
    a('v_lshlrev_b32 v44, 12, v41'); a('v_lshl_add_u32 v44, v42, 7, v44'); a('v_lshl_add_u32 v44, v43, 3, v44')
    a('v_add_u32 v44, %d, v44' % VWIN)
    a('v_lshrrev_b32 v45, 1, v42'); a('v_lshl_or_b32 v45, v47, 1, v45')
    for t4 in range(4):
        a('v_xor_b32 v46, %d, v45' % t4); a('v_lshl_add_u32 v46, v46, 5, v44')
        for o in range(2): a('v_add_u32 v%d, s%d, v46' % (vVA + 4 * o + t4, sT0 + o))
    a('v_lshrrev_b32 v45, 1, v40'); a('v_xor_b32 v45, v45, v41')
    a('s_lshl_b32 s%d, s%d, 2' % (sT0, sP)); a('v_xor_b32 v45, s%d, v45' % sT0); a('v_xor_b32 v46, 4, v45')
    a('v_lshlrev_b32 v44, 7, v40'); a('v_lshl_add_u32 v45, v45, 4, v44'); a('v_lshl_add_u32 v46, v46, 4, v44')
    a('s_mul_i32 s%d, s%d, 6144' % (sT0, sW)); a('s_add_u32 s%d, s%d, %d' % (sT0, sT0, XBASE))
    a('v_add_u32 v%d, s%d, v45' % (vXA, sT0)); a('v_add_u32 v%d, s%d, v46' % (vXA + 1, sT0))
    a('s_lshr_b32 s%d, s%d, 1' % (sT1, sW)); a('s_lshl_b32 s%d, s%d, 11' % (sT0, sT1)); a('s_add_u32 s%d, s%d, %d' % (sT0, sT0, XBASE + 12 * 2048))
    a('v_add_u32 v%d, s%d, v45' % (vXS, sT0))
    a('v_lshlrev_b32 v44, 4, v%d' % vLANE)
    a('s_lshl_b32 s%d, s%d, 13' % (sT0, sW)); a('s_add_u32 s%d, s%d, %d' % (sT0, sT0, EXQ))
    a('v_add_u32 v%d, s%d, v44' % (vEXW, sT0)); a('v_xor_b32 v%d, 0x2000, v%d' % (vEXR, vEXW))
    a('s_mul_i32 s%d, s%d, 3072' % (sT0, sW)); a('v_add_u32 v%d, s%d, v44' % (vOO, sT0))
    a('s_lshl_b32 s%d, s%d, 10' % (sT1, sT1)); a('s_mul_i32 s%d, s%d, 28672' % (sT0, sP)); a('s_add_u32 s%d, s%d, s%d' % (sT0, sT0, sT1))
    a('s_add_u32 s%d, s%d, 12288' % (sT0, sT0)); a('v_add_u32 v%d, s%d, v44' % (vOS, sT0))
    a('v_mov_b32 v45, 0x3f803f80'); a('v_cmp_eq_u32 vcc, 0, v43'); a('v_cndmask_b32 v45, 0, v45, vcc')
    for r in range(4): a('v_accvgpr_write_b32 a%d, v45' % (aONE + r))
    a('v_lshl_add_u32 v45, v41, 2, v42'); a('v_lshlrev_b32 v45, 7, v45'); a('v_lshl_add_u32 v45, v43, 5, v45'); a('v_add_u32 v%d, s%d, v45' % (vU, sM4))
    a('s_and_b32 s%d, s2, 1' % sT0); a('s_lshl_b32 s%d, s%d, 2' % (sT0, sT0)); a('s_add_u32 s%d, s%d, s%d' % (sT0, sT0, sW))
    a('s_lshl_b32 s%d, s%d, 7' % (sT0, sT0)); a('s_lshr_b32 s%d, s2, 1' % sT1); a('s_add_u32 s%d, s%d, s%d' % (sT0, sT0, sT1)); a('s_lshl_b32 s%d, s%d, 12' % (sT0, sT0))
    a('v_add_u32 v%d, s%d, v44' % (vU + 1, sT0))
    if C.stamps:
        a('s_lshl_b32 s%d, s2, 2' % sT0); a('s_add_u32 s%d, s%d, s%d' % (sT0, sT0, sW)); a('s_lshl_b32 s%d, s%d, 9' % (sT0, sT0)); a('v_mov_b32 v43, s%d' % sT0)
    return L

def dma_wo():
    L = []; a = lambda t, **k: L.append(I(t, **k))
    a('s_and_b32 s%d, s2, 1' % sT0); a('s_lshl_b32 s%d, s%d, 2' % (sT0, sT0)); a('s_add_u32 s%d, s%d, s%d' % (sT0, sT0, sW)); a('s_lshl_b32 s%d, s%d, 7' % (sT0, sT0))
    a('s_lshr_b32 s%d, s2, 1' % sT1); a('s_lshl_b32 s%d, s%d, 15' % (sT1, sT1)); a('s_add_u32 s%d, s%d, s%d' % (sT0, sT0, sT1))
    a('v_lshlrev_b32 v46, 10, v40'); a('v_lshl_add_u32 v46, v41, 4, v46')
    a('s_mov_b32 m0, s%d' % sM4)
    for j in range(4):
        a('buffer_load_dwordx4 v46, s[%d:%d], s%d offen offset:%d lds ; tag=wo' % (SWO, SWO + 3, sT0, 1024 * j))
        if j < 3: a('v_add_u32 v46, 7168, v46')
    return L

def dma_chunk(n, lat=None, tok=()):
    st = n % 3; L = []; a = lambda t, **k: L.append(I(t, **k))
    a('s_add_u32 m0, s%d, %d' % (sM4, VWIN + WST[st]), xrd=tok)
    for j in range(4): a('buffer_load_dwordx4 v%d, s[%d:%d], s%d offen offset:%d lds ; tag=c%d' % (vDW + j, SWQ, SWQ + 3, sWQO + n, 1024 * j, n), xrd=tok, lat=lat)
    for j in range(7):
        if j in (0, 4): a('s_add_u32 m0, s%d, %d' % (sM7, XBASE + XST[st] + 1024 * j), xrd=tok)
        a('buffer_load_dwordx4 v%d, s[%d:%d], s%d offen offset:%d lds ; tag=c%d' % (vDX + j, SX, SX + 3, sXO + n, 1024 * (j & 3), n), xrd=tok, lat=lat)
    return L

def dma_kv(which, J, lat=None, tok=('ep',), slot=None, soff=None):
    L = []; a = lambda t, **k: L.append(I(t, **k))
    if which == 'K': base, vd, sr = KWIN + 16384 * (J % 4 if slot is None else slot), vDK, SK
    else: base, vd, sr = VWIN + VSL[J % 4 if slot is None else slot], vDV, SV
    a('s_add_u32 m0, s%d, %d' % (sM4, base), xrd=tok)
    for j in range(4): a('buffer_load_dwordx4 v%d, s[%d:%d], s%d offen offset:%d%s lds ; tag=%s%d' % (vd + j, sr, sr + 3, (sKVO + J) if soff is None else soff, 1024 * j, C.kv_nt, which, J), xrd=tok, lat=lat)
    return L

def barrier(tags):
    w = 'vmcnt(@%s) ' % '|'.join(tags) if tags else ''
    return I('s_waitcnt %slgkmcnt(0)\n    s_barrier' % w, xwr=['ep'], cost=8)

class Ring:
    def __init__(self): self.n = 0
    def next(self):
        r = aF + 4 * (self.n % NAF); self.n += 1; return r

def rd_tfrag(P, ring, o, t, off):
    r = ring.next()
    for e in range(2):
        P.append(I('ds_read_b64_tr_b16 %s, v%d offset:%d' % (d('a', r + 2 * e), vVA + 4 * o + (t & 3), off + (t >> 2) * 1024 + e * 512), xrd=['ep']))
    return r

def QA(t, T): return vO + 16 * t + 4 * T

def qk(P, ring, n, slot, nt, cinit=None, reads_only=None):
    o = n & 1
    for u in range(2):
        for s in range(4):
            r = ring.next()
            P.append(I('ds_read_b128 %s, v%d offset:%d' % (q('a', r), vKA + 2 * o + (s & 1), KWIN + 16384 * slot + (s >> 1) * 1024 + u * 512), xrd=['ep']))
            for T in range(nt):
                sr = vS + 16 * u + 4 * T
                c = q('v', sr) if s else ('0' if cinit is None else q('v', cinit + 4 * T))
                P.append(I('%s %s, %s, %s, %s' % (MF, q('v', sr), q('a', r), q('a', aQ + 16 * T + 4 * s), c)))

def softmax(P, n, nt, pb):
    for u in range(2):
        for T in range(nt):
            sr = vS + 16 * u + 4 * T
            for h2 in range(2):
                P.append(I('v_exp_f32 v%d, v%d' % (sr + 2 * h2, sr + 2 * h2))); P.append(I('v_exp_f32 v%d, v%d' % (sr + 2 * h2 + 1, sr + 2 * h2 + 1)))
                P.append(I('v_cvt_pk_bf16_f32 v%d, v%d, v%d' % (pb + 4 * T + 2 * u + h2, sr + 2 * h2, sr + 2 * h2 + 1)))

def pv(P, ring, n, slot, nt, pb, first):
    o = n & 1
    for T in range(nt):
        P.append(I('%s %s, %s, %s, %s' % (MF, q('a', aL + 4 * T), q('a', aONE), q('v', pb + 4 * T), '0' if first else q('a', aL + 4 * T))))
    for t in range(8):
        r = rd_tfrag(P, ring, o, t, VSL[slot])
        for T in range(nt):
            P.append(I('%s %s, %s, %s, %s' % (MF, q('v', QA(t, T)), q('a', r), q('v', pb + 4 * T), '0' if first else q('v', QA(t, T)))))

def epi_shared_write(P):
    a = lambda t, **k: P.append(I(t, **k))
    for t in range(8): a('ds_write_b128 v%d, %s offset:%d' % (vEXW, q('v', QA(t, 3)), EXO - EXQ + 1024 * t), xrd=['ep'])

def epilogue(P, check=True):
    a = lambda t, **k: P.append(I(t, **k))
    LV = vU
    for T in range(4): a('v_accvgpr_read_b32 v%d, a%d' % (LV + T, aL + 4 * T))
    FL = vU + 4
    if check:
        a('v_min3_f32 v%d, v%d, v%d, v%d' % (FL, LV, LV + 1, LV + 2)); a('v_min_f32 v%d, v%d, v%d' % (FL, FL, LV + 3))
        a('v_add_f32 v%d, v%d, v%d' % (FL + 1, LV, LV + 1)); a('v_add_f32 v%d, v%d, v%d' % (FL + 2, LV + 2, LV + 3)); a('v_add_f32 v%d, v%d, v%d' % (FL + 1, FL + 1, FL + 2))
        a('v_cmp_le_f32 vcc, s%d, v%d' % (sLO, FL)); a('v_cndmask_b32 v%d, 1, 0, vcc' % FL)
        a('v_cmp_ge_f32 vcc, s%d, v%d' % (sHI, FL + 1)); a('v_cndmask_b32 v%d, 1, v%d, vcc' % (FL, FL))
        if C.force_slow: a('v_mov_b32 v%d, 1' % FL)
    else:
        a('v_mov_b32 v%d, 0' % FL)
    a('v_lshlrev_b32 v%d, 3, v0' % (FL + 4)); a('v_mov_b32 v%d, v%d' % (FL + 1, LV + 3))
    a('ds_write_b64 v%d, %s' % (FL + 4, d('v', FL)), xrd=['ep'])
    P.append(barrier([]))
    a('v_xor_b32 v%d, 0x200, v%d' % (FL + 5, FL + 4)); a('v_xor_b32 v%d, 0x400, v%d' % (FL + 6, FL + 4)); a('v_xor_b32 v%d, 0x600, v%d' % (FL + 7, FL + 4))
    a('ds_read_b64 %s, v%d' % (d('v', FL + 2), FL + 5), xrd=['ep'])
    a('ds_read_b32 v%d, v%d' % (FL + 6, FL + 6), xrd=['ep']); a('ds_read_b32 v%d, v%d' % (FL + 7, FL + 7), xrd=['ep'])
    a('s_lshl_b32 s%d, s%d, 12' % (sT0, sP)); a('v_add_u32 v%d, s%d, v%d' % (FL + 4, sT0, vEXW)); a('v_xor_b32 v%d, 0x2000, v%d' % (FL + 5, FL + 4))
    for k in range(4):
        a('ds_read_b128 %s, v%d offset:%d' % (q('v', vS + 4 * k), FL + 4, EXO - EXQ + 1024 * k), xrd=['ep'])
        a('ds_read_b128 %s, v%d offset:%d' % (q('v', vS + 16 + 4 * k), FL + 5, EXO - EXQ + 1024 * k), xrd=['ep'])
    RC = vU + 12
    for T in range(3): a('v_rcp_f32 v%d, v%d' % (RC + T, LV + T))
    def norm_store(src0, src1, T, voff, soff, imm):
        rp = RC + (T & ~1); sel = 'op_sel:[0,1] op_sel_hi:[1,1]' if T & 1 else 'op_sel_hi:[1,0]'
        for src in (src0, src1):
            for h2 in range(2): a('v_pk_mul_f32 %s, %s, %s %s' % (d('v', src + 2 * h2), d('v', src + 2 * h2), d('v', rp), sel))
        a('v_cvt_pk_bf16_f32 v%d, v%d, v%d' % (src0, src0, src0 + 1)); a('v_cvt_pk_bf16_f32 v%d, v%d, v%d' % (src0 + 1, src0 + 2, src0 + 3))
        a('v_cvt_pk_bf16_f32 v%d, v%d, v%d' % (src0 + 2, src1, src1 + 1)); a('v_cvt_pk_bf16_f32 v%d, v%d, v%d' % (src0 + 3, src1 + 2, src1 + 3))
        a('buffer_store_dwordx4 %s, v%d, s[%d:%d], s%d offen offset:%d%s' % (q('v', src0), voff, SOW, SOW + 3, soff, imm, C.st_mod))
    a('v_add_f32 v%d, v%d, v%d' % (LV + 3, LV + 3, FL + 3)); a('v_rcp_f32 v%d, v%d' % (vT, LV + 3))
    for s in range(4):
        for T in range(3): norm_store(QA(2 * s, T), QA(2 * s + 1, T), T, vOO, sOS + s, 1024 * T)
    for k in range(8): a('v_pk_add_f32 %s, %s, %s' % (d('v', vS + 2 * k), d('v', vS + 2 * k), d('v', vS + 16 + 2 * k)))
    RC = vT
    for s in range(2): norm_store(vS + 8 * s, vS + 8 * s + 4, 0, vOS, sOS + s, 0)
    a('v_or3_b32 v%d, v%d, v%d, v%d' % (FL, FL, FL + 2, FL + 6)); a('v_or_b32 v%d, v%d, v%d' % (FL, FL, FL + 7))
    a('v_cmp_ne_u32 vcc, 0, v%d' % FL)

def phase1_main(stamp):
    P = []; a = lambda t, **k: P.append(I(t, **k)); ring = Ring()
    DL = 500
    for n in range(8):
        st = n % 3
        P.append(barrier(['c%d' % n] + (['wo'] if n == 1 else [])))
        if n in (0, 2, 4, 6): stamp(P)
        if 1 <= n <= 5: P.extend(dma_chunk(n + 2, lat=DL, tok=('ep',)))
        if n == 1:
            for u in range(4):
                for e in range(2): a('ds_read_b64_tr_b16 %s, v%d offset:%d' % (d('v', vS + 4 * u + 2 * e), vU, 8 * u + 2048 * e), xrd=['ep'])
            for u in range(4): a('buffer_store_dwordx4 %s, v%d, s[%d:%d], 0 offen offset:%d%s' % (q('v', vS + 4 * u), vU + 1, SWT, SWT + 3, 1024 * u, C.st_mod), xrd=['ep'])
        if n == 2: P.extend(dma_kv('K', 0, lat=100))
        if n == 6:
            for w_, J in (('V', 0), ('K', 1), ('K', 2)): P.extend(dma_kv(w_, J, lat=DL))
        if n == 7: P.extend(dma_kv('V', 1, lat=DL))
        for o in range(2):
            nt = 4 - o; xf = aX + 16 * o
            for T in range(nt):
                if T < 3: a('ds_read_b128 %s, v%d offset:%d' % (q('a', xf + 4 * T), vXA + o, XST[st] + 2048 * T), xrd=['ep'])
                else: a('ds_read_b128 %s, v%d offset:%d' % (q('a', xf + 4 * T), vXS, XST[st]), xrd=['ep'])
            for t in range(8):
                r = rd_tfrag(P, ring, o, t, WST[st])
                for T in range(nt):
                    a('%s %s, %s, %s, %s' % (MF, q('v', QA(t, T)), q('a', r), q('a', xf + 4 * T), '0' if (n == 0 and o == 0) else q('v', QA(t, T))))
            if n == 7 and o == 0:
                for t in range(8): a('ds_write_b128 v%d, %s offset:%d' % (vEXW, q('v', QA(t, 3)), 1024 * t), xrd=['ep'])
    P.append(barrier(['K0']))
    stamp(P)
    P.extend(dma_kv('V', 2, lat=DL)); P.extend(dma_kv('V', 3, lat=DL))
    for t in range(8): a('ds_read_b128 %s, v%d offset:%d' % (q('v', vS + 4 * t), vEXR, 1024 * t), xrd=['ep'])
    for t in range(8):
        for h2 in range(2): a('v_pk_add_f32 %s, %s, %s' % (d('v', QA(t, 3) + 2 * h2), d('v', QA(t, 3) + 2 * h2), d('v', vS + 4 * t + 2 * h2)))
    a('v_mov_b32 v%d, s%d' % (vT, sSC))
    for s in range(4):
        for T in range(4):
            x, y = QA(2 * s, T), QA(2 * s + 1, T)
            for src in (x, y):
                for h2 in range(2): a('v_pk_mul_f32 %s, %s, %s op_sel_hi:[1,0]' % (d('v', src + 2 * h2), d('v', src + 2 * h2), d('v', vT)))
            a('v_cvt_pk_bf16_f32 v%d, v%d, v%d' % (x, x, x + 1)); a('v_cvt_pk_bf16_f32 v%d, v%d, v%d' % (x + 1, x + 2, x + 3))
            a('v_cvt_pk_bf16_f32 v%d, v%d, v%d' % (y, y, y + 1)); a('v_cvt_pk_bf16_f32 v%d, v%d, v%d' % (y + 1, y + 2, y + 3))
            a('v_permlane16_swap_b32 v%d, v%d' % (x, y)); a('v_permlane16_swap_b32 v%d, v%d' % (x + 1, y + 1))
            for k, r in enumerate((x, x + 1, y, y + 1)): a('v_accvgpr_write_b32 a%d, v%d' % (aQ + 16 * T + 4 * s + k, r))
    qk(P, ring, 0, 0, 4); softmax(P, 0, 4, vP)
    for J in range(8):
        qk(P, ring, 2 * J + 1, J % 4, 3)
        P.append(barrier(['V%d' % J] + (['K%d' % (J + 1)] if J < 7 else [])))
        if J in (0, 2, 4, 6): stamp(P)
        if J == 0: P.extend(dma_kv('K', 3, lat=1200))
        if 1 <= J <= 4: P.extend(dma_kv('V', J + 3, lat=1200))
        if J <= 3: P.extend(dma_kv('K', J + 4, lat=1200))
        softmax(P, 2 * J + 1, 3, vP + 16)
        pv(P, ring, 2 * J, J % 4, 4, vP, J == 0)
        if J < 7:
            qk(P, ring, 2 * J + 2, (J + 1) % 4, 4); softmax(P, 2 * J + 2, 4, vP)
        else: epi_shared_write(P)
        pv(P, ring, 2 * J + 1, J % 4, 3, vP + 16, False)
    epilogue(P)
    return P

def phase1_slow():
    out = []
    NEG = vP + 16
    def reg(P, name): out.extend(schedule(P, name=name))
    A = lambda t, **k: out.append(I(t, **k))
    A('L1_slow:'); A('s_waitcnt vmcnt(0) lgkmcnt(0)'); A('s_nop 7'); A('s_barrier')
    for r in range(16): A('v_mov_b32 v%d, 0xff800000' % (NEG + r))
    A('s_mov_b32 s%d, 0' % sOFF)
    A('L1_max:')
    P = dma_kv('K', 0, tok=(), slot=0, soff=sOFF); P.append(I('s_waitcnt vmcnt(0)\n    s_barrier', xwr=['ep', 'm0'], cost=8)); ring = Ring()
    for o in range(2):
        qk(P, ring, o, 0, 4)
        for T in range(4):
            for r in range(4): P.append(I('v_max3_f32 v%d, v%d, v%d, v%d' % (NEG + 4 * T + r, NEG + 4 * T + r, vS + 4 * T + r, vS + 16 + 4 * T + r)))
    reg(P, 'slowmax')
    A('s_waitcnt lgkmcnt(0)'); A('s_barrier'); A('s_add_u32 s%d, s%d, 16384' % (sOFF, sOFF)); A('s_cmp_lt_u32 s%d, 131072' % sOFF); A('s_nop 7'); A('s_cbranch_scc1 L1_max')
    for T in range(4):
        m = NEG + 4 * T
        A('v_max3_f32 v%d, v%d, v%d, v%d' % (m, m, m + 1, m + 2)); A('v_max_f32 v%d, v%d, v%d' % (m, m, m + 3))
        for sw in ('v_permlane16_swap_b32', 'v_permlane32_swap_b32'):
            A('v_mov_b32 v%d, v%d' % (m + 1, m)); A('%s v%d, v%d' % (sw, m, m + 1)); A('v_max_f32 v%d, v%d, v%d' % (m, m, m + 1))
        A('v_sub_f32 v%d, 0, v%d' % (m, m))
        for r in range(1, 4): A('v_mov_b32 v%d, v%d' % (m + r, m))
    for r in range(128): A('v_mov_b32 v%d, 0' % (vO + r))
    for r in range(16): A('v_accvgpr_write_b32 a%d, 0' % (aL + r))
    A('s_mov_b32 s%d, 0' % sOFF)
    A('L1_att:')
    P = dma_kv('K', 0, tok=(), slot=1, soff=sOFF) + dma_kv('V', 0, tok=(), slot=0, soff=sOFF); P.append(I('s_waitcnt vmcnt(0)\n    s_barrier', xwr=['ep', 'm0'], cost=8)); ring = Ring()
    for o in range(2):
        qk(P, ring, o, 1, 4 - o, cinit=NEG); softmax(P, o, 4 - o, vP); pv(P, ring, o, 0, 4 - o, vP, False)
    reg(P, 'slowatt')
    A('s_waitcnt lgkmcnt(0)'); A('s_barrier'); A('s_add_u32 s%d, s%d, 16384' % (sOFF, sOFF)); A('s_cmp_lt_u32 s%d, 131072' % sOFF); A('s_nop 7'); A('s_cbranch_scc1 L1_att')
    P = []; epi_shared_write(P); epilogue(P, check=False); reg(P, 'slowepi')
    A('s_branch L1_done')
    return out

def kernel1():
    stamp = Stamper()
    L = p1_setup() + dma_wo() + dma_chunk(1) + dma_chunk(2) + ([I('s_memtime s[88:89]')] if C.stamps else []) + p1_setup2()
    stamp.entry(L); stamp(L)
    if C.stamps:
        for k, r in enumerate((98, 100, 88)):
            L.append(I('s_nop 1')); L.append(I('v_mov_b32 v44, s%d' % r)); L.append(I('v_mov_b32 v45, s%d' % (r + 1)))
            L.append(I('buffer_store_dwordx4 v[44:47], v43, s[%d:%d], 0 offen offset:%d' % (SST, SST + 3, (24 + k) * 16)))
        L.append(I('s_nop 1'))
    L += schedule(phase1_main(stamp), verbose=True, name='phase1')
    L.append(I('s_cbranch_vccnz L1_slow'))
    L.append(I('L1_done:'))
    E = []; stamp(E); L += E
    if C.stamps:
        L.append(I('s_waitcnt vmcnt(0)')); E = []; stamp(E); L += E
    L.append(I('L1_end:')); L.append(I('s_endpgm'))
    L = fix_hazards(vm_waits(L), verbose=True, name='k1')
    S = fix_hazards(vm_waits(phase1_slow()), verbose=True, name='slow')
    txt = text(L).replace('    s_cbranch_vccnz L1_slow', '    s_nop 4\n    s_cbranch_vccnz L1_slow')
    return txt + '\n' + text(S)

def kernel2():
    L = []; a = lambda t, **k: L.append(I(t, **k))
    stamp = Stamper(); stamp.n = 16
    if C.stamps: a('s_memtime s[94:95]'); a('s_memrealtime s[96:97]')
    a('s_cmp_ge_u32 s2, 256'); a('s_cbranch_scc1 L2_end')
    a('s_load_dwordx4 s[4:7], s[0:1], 40'); a('s_load_dwordx2 s[78:79], s[0:1], 56')
    if C.warm_kb:
        a('s_getpc_b64 s[70:71]'); a('v_lshlrev_b32 v40, 5, v0'); a('global_load_dword v255, v40, s[70:71]')
    a('v_lshrrev_b32 v40, 6, v0'); a('v_and_b32 v%d, 63, v0' % vLANE); a('v_readfirstlane_b32 s%d, v40' % sW)
    sR, sCB = sH, sM4
    a('s_and_b32 s%d, s2, 7' % sB); a('s_bfe_u32 s%d, s2, 0x20003' % sR); a('s_lshr_b32 s%d, s2, 5' % sCB); a('s_and_b32 s%d, s%d, 1' % (sP, sR))
    a('v_lshlrev_b32 v44, 4, v%d' % vLANE)
    a('s_mul_i32 s%d, s%d, %d' % (sT0, sW, 32 * 14336)); a('s_mul_i32 s%d, s%d, 3072' % (sT1, sR)); a('s_add_u32 s%d, s%d, s%d' % (sT1, sT1, sT0)); a('v_add_u32 v2, s%d, v44' % sT1)
    a('s_lshr_b32 s%d, s%d, 1' % (sT1, sR)); a('s_lshl_b32 s%d, s%d, 10' % (sT1, sT1)); a('s_add_u32 s%d, s%d, s%d' % (sT1, sT1, sT0)); a('s_add_u32 s%d, s%d, 12288' % (sT1, sT1)); a('v_add_u32 v3, s%d, v44' % sT1)
    a('s_lshl_b32 s%d, s%d, 19' % (sT0, sCB)); a('s_lshl_b32 s%d, s%d, 17' % (sT1, sW)); a('s_add_u32 s%d, s%d, s%d' % (sT0, sT0, sT1))
    a('s_lshl_b32 s%d, s%d, 11' % (sT1, sP)); a('s_add_u32 s%d, s%d, s%d' % (sT0, sT0, sT1)); a('v_add_u32 v4, s%d, v44' % sT0); a('v_xor_b32 v5, 0x800, v4')
    a('s_waitcnt lgkmcnt(0)')
    a('s_add_u32 s70, s78, %d' % WT_OFF); a('s_addc_u32 s71, s79, 0'); srd(a, SWT, 70, 71, '4194304')
    if C.stamps:
        a('s_add_u32 s70, s78, %d' % STAMP_OFF); a('s_addc_u32 s71, s79, 0'); srd(a, SST, 70, 71, '0x100000')
        a('s_lshl_b32 s%d, s2, 2' % sT0); a('s_add_u32 s%d, s%d, s%d' % (sT0, sT0, sW)); a('s_lshl_b32 s%d, s%d, 9' % (sT0, sT0)); a('v_mov_b32 v43, s%d' % sT0)
    a('s_mul_i32 s%d, s%d, %d' % (sT0, sB, 32 * 57344)); a('s_add_u32 s78, s78, s%d' % sT0); a('s_addc_u32 s79, s79, 0'); srd(a, SOW, 78, 79, str(32 * 57344))
    a('s_mul_i32 s%d, s%d, 229376' % (sT0, sB)); a('s_add_u32 s4, s4, s%d' % sT0); a('s_addc_u32 s5, s5, 0'); srd(a, SOUT, 4, 5, '229376')
    a('s_mov_b32 s64, 0'); a('s_mov_b32 s65, 0')
    stamp.entry(L)
    DEPTH = 7
    ACC = 64
    def loads(k):
        b = 32 * (k % 8)
        for u in range(4): a('buffer_load_dwordx4 %s, v%d, s[%d:%d], s65 offen offset:%d' % (q('a', b + 4 * u), 4 + (u >> 1), SWT, SWT + 3, 1024 * (u & 1)))
        for T in range(3): a('buffer_load_dwordx4 %s, v2, s[%d:%d], s64 offen offset:%d' % (q('a', b + 16 + 4 * T), SOW, SOW + 3, 1024 * T))
        a('buffer_load_dwordx4 %s, v3, s[%d:%d], s64 offen' % (q('a', b + 28), SOW, SOW + 3))
        a('s_add_u32 s64, s64, 14336'); a('s_add_u32 s65, s65, 4096')
    for k in range(DEPTH): loads(k)
    for k in range(32):
        b = 32 * (k % 8)
        n0 = len(L)
        if k + DEPTH < 32: loads(k + DEPTH)
        ld = L[n0:]; del L[n0:]
        mf = []
        for T in (3, 0, 1, 2):
            for u in range(4 if T < 3 else 2):
                ac = ACC + 16 * T + 4 * u
                mf.append(I('%s %s, %s, %s, %s' % (MF, q('v', ac), q('a', b + 4 * u), q('a', b + 16 + 4 * T), '0' if k == 0 else q('v', ac))))
        for j, m in enumerate(mf):
            L.append(m)
            if j < len(ld): L.append(ld[j])
    stamp(L)
    a('s_mul_i32 s%d, s%d, 16384' % (sT0, sW)); a('v_lshlrev_b32 v44, 4, v%d' % vLANE); a('v_add_u32 v6, s%d, v44' % sT0)
    a('s_lshl_b32 s%d, s%d, 12' % (sT0, sW)); a('v_add_u32 v7, s%d, v44' % sT0)
    for j in range(14): a('ds_write_b128 v6, %s offset:%d' % (q('v', ACC + 4 * j), 1024 * j))
    a('s_mul_i32 s%d, s%d, 3' % (sT0, sR)); a('s_add_u32 s%d, s%d, s%d' % (sT0, sT0, sW))
    a('s_lshr_b32 s%d, s%d, 1' % (sT1, sR)); a('s_add_u32 s%d, s%d, 12' % (sT1, sT1))
    a('s_cmp_eq_u32 s%d, 3' % sW); a('s_cselect_b32 s%d, s%d, s%d' % (sT0, sT1, sT0))
    a('s_cselect_b32 s%d, 0x100000, 0' % sT2)
    a('s_lshl_b32 s%d, s%d, 14' % (sT0, sT0)); a('s_lshl_b32 s%d, s%d, 7' % (sT1, sCB)); a('s_add_u32 s%d, s%d, s%d' % (sT0, sT0, sT1))
    a('s_lshl_b32 s%d, s%d, 4' % (sT1, sP)); a('s_add_u32 s%d, s%d, s%d' % (sT0, sT0, sT1))
    a('v_and_b32 v8, 15, v%d' % vLANE); a('v_lshrrev_b32 v9, 4, v%d' % vLANE); a('v_lshlrev_b32 v8, 10, v8'); a('v_lshl_add_u32 v8, v9, 5, v8')
    a('v_add_u32 v8, s%d, v8' % sT0); a('v_xor_b32 v9, 16, v8')
    a('s_waitcnt lgkmcnt(0)'); a('s_barrier')
    for sw in range(4):
        for u in range(4): a('ds_read_b128 %s, v7 offset:%d' % (q('v', 128 + 16 * sw + 4 * u), 16384 * sw + 1024 * u))
    for k in range(8): a('v_pk_add_f32 %s, %s, %s' % (d('v', 128 + 2 * k), d('v', 128 + 2 * k), d('v', 144 + 2 * k)))
    for k in range(8): a('v_pk_add_f32 %s, %s, %s' % (d('v', 160 + 2 * k), d('v', 160 + 2 * k), d('v', 176 + 2 * k)))
    for k in range(8): a('v_pk_add_f32 %s, %s, %s' % (d('v', 128 + 2 * k), d('v', 128 + 2 * k), d('v', 160 + 2 * k)))
    for k in range(8): a('v_cvt_pk_bf16_f32 v%d, v%d, v%d' % (144 + k, 128 + 2 * k, 129 + 2 * k))
    a('buffer_store_dwordx4 v[144:147], v8, s[%d:%d], 0 offen' % (SOUT, SOUT + 3))
    a('buffer_store_dwordx4 v[148:151], v9, s[%d:%d], s%d offen' % (SOUT, SOUT + 3, sT2))
    if C.stamps:
        a('s_waitcnt vmcnt(0)'); stamp(L)
    a('L2_end:'); a('s_endpgm')
    return text(fix_hazards(lgkm_waits(vm_waits(L)), verbose=True, name='k2'))

def build(path):
    k1 = kernel1(); k2 = kernel2()
    s = kernel_file([dict(name='attn_kernel', grid=256, block=256, lds=163840, body=k1, vgpr=512, accum=256),
                     dict(name='oproj_kernel', grid=256, block=256, lds=65536, body=k2 + '\n.fill 2048, 4, 0xbf800000', vgpr=512, accum=256)])
    open(path, 'w').write(s)

if __name__ == '__main__':
    for kv in sys.argv[2:]:
        k, v = kv.split('='); setattr(C, k, eval(v))
    build(sys.argv[1])
```

```python
def reporter(kind, ia, ib, factor, word=2, shift=0, stamp_off=32*1024*1024):
    L = []; a = L.append
    a("s_cmp_ge_u32 s2, 1"); a("s_cbranch_scc1 LR_end")
    a("s_load_dwordx2 s[6:7], s[0:1], 56"); a("s_waitcnt lgkmcnt(0)")
    a("s_add_u32 s6, s6, %d" % stamp_off); a("s_addc_u32 s7, s7, 0")
    a("s_mov_b32 s12, s6"); a("s_mov_b32 s13, s7"); a("s_mov_b32 s14, 0x100000"); a("s_mov_b32 s15, 0x20000")
    a("v_lshlrev_b32 v1, 9, v0"); a("s_mov_b32 s44, 0")
    for i in range(16):
        a("buffer_load_dword v%d, v1, s[12:15], s44 offen offset:%d" % (8 + i, 16 * ia + 4 * word))
        a("buffer_load_dword v%d, v1, s[12:15], s44 offen offset:%d" % (24 + i, 16 * ib + 4 * word))
        a("s_add_u32 s44, s44, 32768")
    a("s_waitcnt vmcnt(0)")
    a("v_readfirstlane_b32 s20, v8"); a("s_nop 3"); a("s_sub_u32 s20, s20, 0x1000000")
    if kind == 'mean':
        a("v_mov_b32 v2, 0"); a("v_mov_b32 v3, 0")
        for i in range(16): a("v_sub_u32 v4, v%d, v%d" % (24 + i, 8 + i)); a("v_add_u32 v3, v3, v4")
        opa = opb = 's_add_u32'
    else:
        for i in range(32): a("v_subrev_u32 v%d, s20, v%d" % (8 + i, 8 + i))
        va, vb = {'span': ('min', 'max'), 'minmin': ('min', 'min'), 'maxmin': ('max', 'min'), 'maxmax': ('max', 'max')}[kind]
        a("v_mov_b32 v2, v8"); a("v_mov_b32 v3, v24")
        for i in range(1, 16): a("v_%s_u32 v2, v2, v%d" % (va, 8 + i)); a("v_%s_u32 v3, v3, v%d" % (vb, 24 + i))
        opa, opb = 's_%s_u32' % va, 's_%s_u32' % vb
    a("s_nop 1"); a("v_readlane_b32 s22, v2, 0"); a("v_readlane_b32 s23, v3, 0")
    for l in range(1, 64):
        a("v_readlane_b32 s24, v2, %d" % l); a("v_readlane_b32 s25, v3, %d" % l); a("s_nop 1")
        a("%s s22, s22, s24" % opa); a("%s s23, s23, s25" % opb)
    a("s_sub_u32 s23, s23, s22")
    a("s_mul_i32 s23, s23, %d" % factor)
    a("s_lshr_b32 s23, s23, %d" % (shift + (10 if kind == 'mean' else 0)))
    a("s_min_u32 s23, s23, 100000")
    a("s_memrealtime s[26:27]"); a("s_waitcnt lgkmcnt(0)")
    a("LR_spin:"); a("s_memrealtime s[28:29]"); a("s_waitcnt lgkmcnt(0)"); a("s_sub_u32 s30, s28, s26"); a("s_cmp_lt_u32 s30, s23"); a("s_cbranch_scc1 LR_spin")
    a("LR_end:"); a("s_endpgm")
    return dict(name='report_kernel', grid=1, block=64, lds=0, body="\n".join(L), vgpr=48, accum=48)
```

```python
import gen1, sys
from asmlib import *
from reporter import reporter
gen1.C.stamps = True; gen1.C.st_mod = ' sc1'
k1 = gen1.kernel1(); k2 = gen1.kernel2()
def mk(name, r):
    s = kernel_file([dict(name='attn_kernel', grid=256, block=256, lds=163840, body=k1, vgpr=512, accum=256),
                     dict(name='oproj_kernel', grid=256, block=256, lds=65536, body=k2 + '\n.fill 2048, 4, 0xbf800000', vgpr=512, accum=256), r])
    open(name, "w").write(s)
mk("rep_a0.s", reporter('span', 0, 18, 0))
mk("rep_a1.s", reporter('span', 0, 18, 10))
mk("rep_a2.s", reporter('span', 0, 12, 10))
mk("rep_a3.s", reporter('span', 16, 18, 10))
mk("rep_a4.s", reporter('mean', 0, 2, 10))
mk("rep_a5.s", reporter('mean', 2, 6, 10))
mk("rep_b0.s", reporter('mean', 6, 7, 10))
mk("rep_b1.s", reporter('mean', 7, 10, 10))
mk("rep_b2.s", reporter('mean', 7, 10, 1, word=0))
mk("rep_b3.s", reporter('mean', 10, 12, 10))
mk("rep_b4.s", reporter('span', 0, 0, 10))
mk("rep_b5.s", reporter('mean', 16, 17, 1, word=0))
```
